```python
import torch

def _softmax(x, axis=-1):
    return torch.softmax(x, dim=axis)
def _gelu(x):
    return torch.nn.functional.gelu(x, approximate="tanh")
def _silu(x):
    return torch.nn.functional.silu(x)
def _sigmoid(x):
    return torch.sigmoid(x)
def _layernorm(x, axis=-1, eps=1e-5):
    m = x.mean(dim=axis, keepdim=True)
    v = x.var(dim=axis, keepdim=True, unbiased=False)
    return (x - m) / torch.sqrt(v + eps)
def _scatter_add(tgt, idx, src, axis=0):
    return tgt.clone().index_add_(axis, idx, src)
def _segment_sum(src, seg, n):
    out = torch.zeros((n,) + src.shape[1:], dtype=src.dtype)
    return out.index_add_(0, seg, src)
def _pad(x, pw):
    flat = tuple(v for pair in reversed(pw) for v in pair)
    return torch.nn.functional.pad(x, flat)

kernel_name = 'standalone__mha_block_cached__near_ridge'

def setup_inputs():

    _w = (lambda a: (lambda t: t.to(torch.bfloat16) if t.is_floating_point() else t)(torch.as_tensor(a)))
    B, Sq, D = 8, 160, 1024
    H, Sk, Dh = 32, 512, 128
    return {
        "x": _w((lambda *s: torch.randn(*s, dtype=torch.bfloat16) * 0.8)(B, Sq, D)),
        "k_cache": _w((lambda *s: torch.randn(*s, dtype=torch.bfloat16) * 0.8)(B, H, Sk, Dh)),
        "v_cache": _w((lambda *s: torch.randn(*s, dtype=torch.bfloat16) * 0.05)(B, H, Sk, Dh)),
        "wq": _w((lambda *s: torch.randn(*s, dtype=torch.bfloat16) * 0.8)(D, H * Dh) * (D ** -0.5)),
        "wo": _w((lambda *s: torch.randn(*s, dtype=torch.bfloat16) * 0.05)(H * Dh, D) * ((H * Dh) ** -0.5)),
    }

def reference(x, k_cache, v_cache, wq, wo):
    B, Sq, D = x.shape
    H, Dh = 32, 128
    q = (lambda x, *d: x.permute(*d))((x @ wq).reshape(B, Sq, H, Dh), 0, 2, 1, 3)
    scores = torch.einsum("bhqd,bhkd->bhqk", q, k_cache) * (Dh ** -0.5)
    p = _softmax(scores, axis=-1)
    o = torch.einsum("bhqk,bhkd->bhqd", p, v_cache)
    return (lambda x, *d: x.permute(*d))(o, 0, 2, 1, 3).reshape(B, Sq, H * Dh) @ wo
```

```python
import re

class Asm:
    def __init__(self):
        self.lines = []
    def __call__(self, s):
        for l in s.split("\n"):
            self.lines.append(l)
    def label(self, n):
        self.lines.append(f"{n}:")
    def c(self, s):
        self.lines.append(f"    ; {s}")
    def ext(self, ls):
        for l in ls: self(l)
    def text(self):
        out = []
        for l in self.lines:
            t = l.strip()
            if not t: out.append(""); continue
            if t.endswith(":") or t.startswith(".") or t.startswith(";"):
                out.append(l if l.startswith(" ") else t)
            else:
                out.append("    " + t)
        return "\n".join(out) + "\n"

def vr(a, n=1):
    return f"v{a}" if n == 1 else f"v[{a}:{a+n-1}]"
def sr(a, n=1):
    return f"s{a}" if n == 1 else f"s[{a}:{a+n-1}]"

def weave(mfmas, fillers, lead=0):
    out = []
    for i, m in enumerate(mfmas):
        out.append(m)
        if i < len(fillers): out.extend(fillers[i])
    for f in fillers[len(mfmas):]: out.extend(f)
    return out

def spread(items, ngaps, start=0, end=None):
    if end is None: end = ngaps
    g = [[] for _ in range(ngaps)]
    n = len(items); w = end - start
    for i, it in enumerate(items):
        g[start + (i * w) // n].append(it)
    return g

def merge(*gs):
    n = max(len(g) for g in gs)
    out = [[] for _ in range(n)]
    for g in gs:
        for i, x in enumerate(g): out[i].extend(x)
    return out

_reg = re.compile(r"^(-|abs\()?([vsa])(\d+)\)?$")
_rng = re.compile(r"^(-|abs\()?([vsa])\[(\d+):(\d+)\]\)?$")
def regs(op):
    op = op.strip()
    m = _reg.match(op)
    if m: return {(m.group(2), int(m.group(3)))}
    m = _rng.match(op)
    if m: return {(m.group(2), i) for i in range(int(m.group(3)), int(m.group(4)) + 1)}
    if op == "vcc": return {("s", "vcc")}
    if op == "exec": return {("s", "exec")}
    if op == "m0": return {("s", "m0")}
    return set()

TRANS = ("v_exp_f32", "v_log_f32", "v_rcp_f32", "v_rsq_f32", "v_sqrt_f32", "v_sin_f32", "v_cos_f32")
class Ins:
    def __init__(self, text, lineno):
        self.text = text; self.lineno = lineno
        t = text.split(";")[0].strip()
        parts = t.split(None, 1)
        self.op = parts[0]
        for suf in ("_e32", "_e64"):
            if self.op.endswith(suf): self.op = self.op[:-4]
        rest = parts[1] if len(parts) > 1 else ""
        ops = [o.strip() for o in rest.split(",")] if rest else []
        mods = ""
        if ops:
            last = ops[-1].split()
            ops[-1] = last[0]; mods = " ".join(last[1:])
        self.ops = ops; self.mods = mods
        o = self.op
        self.kind = "salu"; self.w = set(); self.r = set(); self.A = self.B = self.C = set(); self.passes = 0
        self.states = 1; self.data = set()
        R = lambda i: regs(ops[i]) if i < len(ops) else set()
        if o.startswith("v_mfma"):
            self.kind = "mfma"; self.w = R(0); self.A = R(1); self.B = R(2); self.C = R(3)
            self.r = self.A | self.B | self.C
            self.passes = 8 if "32x32x16" in o else 4 if "16x16x32" in o else None
        elif o.startswith("v_"):
            self.kind = "valu"
            self.w = R(0); st = 1
            if "_co_" in o or o.startswith("v_div_scale") or o.startswith("v_mad_u64"):
                self.w |= R(1); st = 2
            for i in range(st, len(ops)): self.r |= R(i)
            if o.startswith("v_fmac") or o.startswith("v_permlane") or o.startswith("v_writelane") or o.startswith("v_dot2c"):
                self.r |= R(0)
            if o.startswith("v_permlane") and "swap" in o: self.w |= R(1)
            if o.startswith("v_cmpx"): self.w |= {("s", "exec")}
            if o.startswith("v_cndmask") and len(ops) == 3: self.r |= {("s", "vcc")}
        elif o.startswith("ds_"):
            self.kind = "ds"
            if o.startswith("ds_read") or "permute" in o or "swizzle" in o:
                self.w = R(0)
                for i in range(1, len(ops)): self.r |= R(i)
            else:
                for i in range(len(ops)): self.r |= R(i)
        elif o.startswith("buffer_") or o.startswith("global_"):
            self.kind = "vmem"
            lds = (" lds" in " " + mods) or "load_lds" in o
            self.lds = lds
            if "load" in o and not lds:
                self.w = R(0)
                for i in range(1, len(ops)): self.r |= R(i)
            else:
                for i in range(len(ops)): self.r |= R(i)
                if lds: self.r |= {("s", "m0")}
                if "store" in o and ("x4" in o or "x3" in o):
                    self.data = R(0) if o.startswith("buffer_") else R(1)
                if "atomic" in o and " sc0" in " " + mods:
                    self.w = R(0)
        elif o == "s_nop":
            self.kind = "nop"; self.states = int(ops[0], 0) + 1
        elif o.startswith("s_"):
            nodst = ("s_cmp", "s_cbranch", "s_branch", "s_waitcnt", "s_barrier", "s_endpgm", "s_setprio", "s_sleep", "s_setpc", "s_bitcmp")
            if not o.startswith(nodst):
                self.w = R(0)
                for i in range(1, len(ops)): self.r |= R(i)
                if "saveexec" in o: self.w |= {("s", "exec")}
            else:
                for i in range(len(ops)): self.r |= R(i)
        self.trans = o in TRANS

def need(p, c):
    n = 0; why = ""
    def up(k, w):
        nonlocal n, why
        if k > n: n = k; why = w
    vw = {x for x in p.w if x[0] in "va"}
    sw = {x for x in p.w if x[0] == "s"}
    if p.kind == "valu":
        if c.kind == "mfma" and vw & c.r: up(2, "valu->mfma read")
        if c.kind == "valu" and c.op.startswith("v_permlane") and vw & c.r: up(2, "valu->permlane")
        if c.kind == "valu" and c.op.startswith(("v_readfirstlane", "v_readlane")) and vw & c.r: up(1, "valu->readlane")
        if p.trans and c.kind in ("valu",) and not c.trans and vw & c.r: up(1, "trans->valu")
        if p.trans and c.kind in ("valu",) and c.trans and vw & c.r: up(1, "trans->trans(safe)")
        if p.trans and c.kind in ("ds", "vmem") and vw & c.r: up(1, "trans->mem(safe)")
        if c.kind == "vmem" and sw & c.r: up(5, "valu sgpr->vmem")
        if c.kind == "valu" and sw & c.r: up(2, "valu sgpr->valu const")
        if c.kind == "valu" and "dpp" in c.mods and vw & c.r: up(2, "valu->dpp")
        if ("s", "exec") in sw and c.kind == "mfma": up(4, "valu exec->mfma")
        if c.kind == "salu" and sw & c.r and not c.op.startswith("s_cbranch"): up(1, "valu sgpr->salu(safe)")
    if p.kind == "mfma":
        big = {4: 8, 8: 12}[p.passes]; ovl = {4: 6, 8: 10}[p.passes]; war = {4: 3, 8: 7}[p.passes]
        if c.kind == "mfma":
            if vw & (c.A | c.B): up(big, "mfma D->mfma A/B")
            if vw & c.C:
                if not (vw == c.C and c.passes == p.passes): up(ovl, "mfma D->mfma C overlap")
            if vw & c.w and not (vw == c.w and vw == c.C): up(ovl, "mfma D->mfma D WAW(safe)")
        elif c.kind in ("valu", "ds", "vmem"):
            if vw & (c.r | c.w): up(big, "mfma D->valu/mem")
        if c.kind == "valu" and p.C & c.w: up(war, "mfma C WAR valu")
        if c.kind in ("ds", "vmem") and p.C & c.w: up(war, "mfma C WAR load(safe)")
    if p.kind == "salu":
        if ("s", "m0") in sw and c.kind == "vmem" and getattr(c, "lds", False): up(1, "m0->lds dma")
    if p.kind == "vmem" and p.data:
        if c.kind == "valu" and p.data & c.w: up(2, "store data WAR")
        elif c.kind in ("ds", "vmem", "mfma") and p.data & c.w: up(1, "store data WAR")
    return n, why

def check(text):
    ins = []; labels = {}
    for ln, l in enumerate(text.split("\n"), 1):
        t = l.split(";")[0].strip()
        if not t or t.startswith("."): continue
        if t.endswith(":"):
            labels[t[:-1]] = len(ins); continue
        ins.append(Ins(t, ln))
    def succ(i):
        o = ins[i].op
        if o == "s_endpgm" or o == "s_setpc_b64": return []
        if o == "s_branch": return [labels[ins[i].ops[0]]]
        if o.startswith("s_cbranch"): return [labels[ins[i].ops[0]], i + 1]
        if o == "s_call_b64": return [labels[ins[i].ops[1]], i + 1]
        return [i + 1]
    errs = []
    for i, p in enumerate(ins):
        if p.kind not in ("valu", "mfma", "salu", "vmem"): continue
        if p.kind == "salu" and ("s", "m0") not in p.w: continue
        if p.kind == "vmem" and not p.data: continue
        seen = {}
        st = [(j, 0) for j in succ(i)]
        while st:
            j, d = st.pop()
            if j >= len(ins) or d >= 12: continue
            if seen.get(j, 99) <= d: continue
            seen[j] = d
            c = ins[j]
            n, why = need(p, c)
            if n > d: errs.append(f"line {p.lineno}: '{p.text}' -> line {c.lineno}: '{c.text}': need {n} have {d} ({why})")
            for k in succ(j): st.append((k, d + c.states))
    return errs, len(ins)
```

```python
import sys, math, struct
from asmlib import *

def f32hex(x): return "0x%08x" % struct.unpack("<I", struct.pack("<f", x))[0]

class Cfg:
    kv_nt = False
    xw_nt = False
    wo_nt = False
    o_nt = False
    rot = True
    stamps = False
    thr = 8.0
    kv_start = 2
    k2_rot = False

HEAD = """.amdgcn_target "amdgcn-amd-amdhsa--gfx950"
.text"""

def kstart(a, name):
    a(f".globl {name}"); a(".p2align 8"); a(f".type {name},@function"); a.label(name)

def kdesc(a, name, vgpr=256, sgpr=96):
    a(".p2align 6")
    a(f".amdhsa_kernel {name}")
    a(f"  .amdhsa_next_free_vgpr {vgpr}"); a(f"  .amdhsa_next_free_sgpr {sgpr}"); a(f"  .amdhsa_accum_offset {(vgpr+3)//4*4}")
    a("  .amdhsa_group_segment_fixed_size 0"); a("  .amdhsa_kernarg_size 64"); a("  .amdhsa_user_sgpr_count 2")
    a("  .amdhsa_user_sgpr_kernarg_segment_ptr 1"); a("  .amdhsa_system_sgpr_workgroup_id_x 1")
    a(".end_amdhsa_kernel")

def srd(a, d, b, size):
    a(f"s_mov_b32 s{d}, s{b}"); a(f"s_mov_b32 s{d+1}, s{b+1}"); a(f"s_mov_b32 s{d+2}, {size}"); a(f"s_mov_b32 s{d+3}, 0x20000")

STAMP_BASE = 64 << 20
class Stamper:
    def __init__(self, a, cfg, first=64):
        self.a = a; self.on = cfg.stamps; self.n = 0; self.first = first
    def stamp(self):
        if not self.on: return
        self.a(f"s_memtime s[{self.first+2*self.n}:{self.first+2*self.n+1}]"); self.n += 1
    def flush(self, srdreg, widreg, kern):
        if not self.on: return
        a = self.a
        a("s_waitcnt lgkmcnt(0)")
        a(f"s_lshl_b32 s3, s2, 3"); a(f"s_add_u32 s3, s3, s{widreg}"); a("s_lshl_b32 s3, s3, 6")
        a(f"s_add_u32 s3, s3, {STAMP_BASE + kern*(1<<20)}")
        a("v_mov_b32 v2, 0")
        for i in range(self.n):
            a(f"v_mov_b32 v3, s{self.first+2*i}")
            a(f"buffer_store_dword v3, v2, s[{srdreg}:{srdreg+3}], s3 offen offset:{4*i}")
        a("s_waitcnt vmcnt(0)")

class VmTrack:
    def __init__(self): self.tags = []
    def issue(self, tag): self.tags.append(tag)
    def wait(self, tag):
        last = max(i for i, t in enumerate(self.tags) if t == tag)
        return min(63, len(self.tags) - 1 - last)

KSLOT = [0, 1, 6, 8, 3, 5, 1, 7]
VSLOT = [2, 7, 9, 4, 0, 2, 6, 8]
RING0 = 48 * 1024; RSTRIDE = 36 * 1024; WOFF = 20480
QX = 48 * 1024
COMB = 3 * 16384; CML = 9 * 16384
O_BYTES = 1280 * 4096 * 2

def gen_k1(a, cfg, name):
    SX, SK, SV, SWQ, SWS = 8, 12, 16, 20, 24
    sW, sB, sH, sHW = 28, 29, 30, 31
    sT = 32; sKT = 33; sVT = 34; sKcur = 35; sVcur = 36; sD = 37; sCnt = 38; sN = 39
    sRet = 40
    sT0, sT1, sT2, sT3 = 42, 43, 44, 45
    sKV = 46; sXo = 47; sWo = 48; sRot = 49; sOb = 50; sOb2 = 51; sSc = 52
    vL = 1
    vXA = 8; vWA = 10
    vl0, vl1 = 14, 15
    vKA = 16; vVA = 24
    vMX = 28; vT0, vT1, vT2 = 29, 30, 31
    SET = [32, 68]
    ACC = 176
    vQ = 32; SS = [64, 80]; NEGM = 96; PP = [112, 120]; KF = 128; VF = 160; OO = 192
    st = Stamper(a, cfg)
    kvnt = " nt" if cfg.kv_nt else ""
    xwnt = " nt" if cfg.xw_nt else ""

    kstart(a, name)
    a("s_cmp_ge_u32 s2, 256"); a("s_cbranch_scc1 K1_end")
    st.stamp()
    a("s_load_dwordx4 s[52:55], s[0:1], 0")
    a("s_load_dwordx4 s[56:59], s[0:1], 16")
    a("s_load_dwordx2 s[60:61], s[0:1], 56")
    a("v_lshrrev_b32 v2, 6, v0"); a(f"v_and_b32 v{vL}, 63, v0")
    a(f"v_readfirstlane_b32 s{sW}, v2")
    a("s_and_b32 s3, s2, 7"); a("s_lshr_b32 s4, s2, 3")
    a("s_and_b32 s5, s3, 1"); a("s_lshl_b32 s5, s5, 2"); a("s_and_b32 s6, s4, 3"); a(f"s_add_u32 s{sB}, s5, s6")
    a("s_lshr_b32 s5, s3, 1"); a("s_lshl_b32 s5, s5, 3"); a("s_lshr_b32 s7, s4, 2"); a(f"s_add_u32 s{sH}, s5, s7")
    if cfg.rot:
        a("s_lshl_b32 s6, s6, 1"); a("s_add_u32 s6, s6, s7"); a("s_and_b32 s6, s6, 7"); a(f"s_lshl_b32 s{sRot}, s6, 1")
    else:
        a(f"s_mov_b32 s{sRot}, 0")
    a("s_waitcnt lgkmcnt(0)")
    srd(a, SX, 52, 8*160*1024*2); srd(a, SK, 54, 1 << 25); srd(a, SV, 56, 1 << 25); srd(a, SWQ, 58, 1 << 23)
    srd(a, SWS, 60, (1 << 28) if cfg.stamps else O_BYTES)
    a(f"s_mov_b32 s{sT}, {f32hex(cfg.thr)}")
    a(f"v_lshrrev_b32 v2, 4, v{vL}"); a(f"v_and_b32 v3, 15, v{vL}"); a(f"v_bfe_u32 v4, v{vL}, 2, 2"); a(f"v_and_b32 v5, 3, v{vL}")
    a(f"s_cmp_ge_u32 s{sW}, 4"); a("s_cbranch_scc1 K1_helper")

    def attn_addrs(tperm_sreg=None):
        a(f"v_and_b32 v6, 31, v{vL}"); a("v_lshlrev_b32 v6, 8, v6")
        a(f"v_lshrrev_b32 v7, 5, v{vL}"); a("v_xor_b32 v7, v7, v3"); a("v_lshl_add_u32 v6, v7, 4, v6")
        for s in range(8):
            a(f"v_xor_b32 v{vKA+s}, {s << 5}, v6")
        a(f"v_lshrrev_b32 v6, 5, v{vL}"); a("v_lshl_add_u32 v6, v6, 2, v4"); a("v_lshlrev_b32 v6, 8, v6")
        a("v_lshl_add_u32 v6, v4, 6, v6")
        a("v_and_b32 v7, 1, v2"); a("v_lshl_add_u32 v6, v7, 5, v6"); a("v_lshl_add_u32 v6, v5, 3, v6")
        if tperm_sreg is not None:
            a(f"s_lshl_b32 s{sT0}, s{tperm_sreg}, 6"); a(f"v_xor_b32 v6, s{sT0}, v6")
        for t in range(4):
            a(f"v_xor_b32 v{vVA+t}, {t << 6}, v6")

    def kreads(sub):
        return [f"ds_read_b128 {vr(KF+4*s,4)}, v{vKA+s} offset:{sub*8192}" for s in range(8)]
    def vreads(sub):
        out = []
        for sg in range(2):
            for t in range(4):
                r = VF + 4*(sg*4+t)
                out.append([f"ds_read_b64_tr_b16 {vr(r,2)}, v{vVA+t} offset:{(32*sub+16*sg)*256}",
                            f"ds_read_b64_tr_b16 {vr(r+2,2)}, v{vVA+t} offset:{(32*sub+16*sg+8)*256}"])
        return out
    def s_mfmas(S, cinit):
        out = []
        for s in range(8):
            c = cinit if s == 0 else vr(S, 16)
            out.append(f"v_mfma_f32_32x32x16_bf16 {vr(S,16)}, {vr(KF+4*s,4)}, {vr(vQ+4*s,4)}, {c}")
        return out
    def pv_mfmas(P):
        return [f"v_mfma_f32_32x32x16_bf16 {vr(OO+16*t,16)}, {vr(VF+4*(sg*4+t),4)}, {vr(P+4*sg,4)}, {vr(OO+16*t,16)}"
                for sg in range(2) for t in range(4)]
    def max_ops(S):
        o = [f"v_max3_f32 v{vMX}, v{S}, v{S+1}, v{S+2}", f"v_max3_f32 v{vT0}, v{S+3}, v{S+4}, v{S+5}"]
        o += [f"v_max3_f32 v{vMX}, v{vMX}, v{S+6}, v{S+7}", f"v_max3_f32 v{vT0}, v{vT0}, v{S+8}, v{S+9}"]
        o += [f"v_max3_f32 v{vMX}, v{vMX}, v{S+10}, v{S+11}", f"v_max3_f32 v{vT0}, v{vT0}, v{S+12}, v{S+13}"]
        o += [f"v_max3_f32 v{vMX}, v{vMX}, v{S+14}, v{S+15}", f"v_max_f32 v{vMX}, v{vMX}, v{vT0}"]
        return o
    def sm_ops(S, P):
        o = []
        for j in range(8):
            o.append(f"v_exp_f32 v{S+2*j}, v{S+2*j}")
            o.append(f"v_exp_f32 v{S+2*j+1}, v{S+2*j+1}")
            if j > 0:
                o.append(f"v_add_f32 v{vl0}, v{vl0}, v{S+2*j-2}")
                o.append(f"v_add_f32 v{vl1}, v{vl1}, v{S+2*j-1}")
                o.append(f"v_cvt_pk_bf16_f32 v{P+j-1}, v{S+2*j-2}, v{S+2*j-1}")
        o.append(f"v_add_f32 v{vl0}, v{vl0}, v{S+14}")
        o.append(f"v_add_f32 v{vl1}, v{vl1}, v{S+15}")
        o.append(f"v_cvt_pk_bf16_f32 v{P+7}, v{S+14}, v{S+15}")
        return o
    def xhalf(op, dst):
        return [f"v_mov_b32 v{vT1}, v{dst}", "s_nop 1", f"v_permlane32_swap_b32 v{dst}, v{vT1}", f"{op} v{dst}, v{dst}, v{vT1}"]
    def first_max_ops(S):
        o = max_ops(S) + xhalf("v_max_f32", vMX)
        o += [f"v_sub_f32 v{NEGM+i}, 0, v{vMX}" for i in range(16)]
        o += [f"v_sub_f32 v{S+i}, v{S+i}, v{vMX}" for i in range(16)]
        return o
    tramps = []
    def check_ops(par, tag):
        tramps.append((tag, par))
        return [f"v_cmp_lt_f32 vcc, s{sT}, v{vMX}", f"s_cbranch_vccnz K1_tr_{tag}", f"K1_bk_{tag}:"]
    def rebase(tabreg, cur, addr, n):
        o = [f"s_lshr_b32 s{tabreg}, s{tabreg}, 4", f"s_and_b32 s{sN}, s{tabreg}, 15", f"s_lshl_b32 s{sN}, s{sN}, 14",
             f"s_sub_u32 s{sD}, s{sN}, s{cur}", f"s_mov_b32 s{cur}, s{sN}"]
        return o, [f"v_add_u32 v{addr+i}, s{sD}, v{addr+i}" for i in range(n)]

    a.c("---- main: q-proj setup")
    a(f"s_and_b32 s{sT0}, s{sW}, 1"); a(f"s_lshr_b32 s{sT1}, s{sW}, 1")
    a(f"s_mul_i32 s{sT2}, s{sT1}, {80*128}"); a(f"s_add_u32 s{sT2}, s{sT2}, {RING0}")
    a("v_lshrrev_b32 v6, 1, v3"); a("v_xor_b32 v6, v6, v2"); a("v_lshlrev_b32 v6, 4, v6"); a("v_lshl_add_u32 v6, v3, 7, v6")
    a(f"v_add_u32 v{vXA}, s{sT2}, v6"); a(f"v_xor_b32 v6, 64, v6"); a(f"v_add_u32 v{vXA+1}, s{sT2}, v6")
    a("v_and_b32 v6, 1, v2"); a("v_lshl_or_b32 v6, v6, 2, v4"); a(f"s_lshl_b32 s{sT3}, s{sT0}, 2"); a(f"v_xor_b32 v6, s{sT3}, v6")
    a("v_lshlrev_b32 v6, 5, v6"); a("v_lshl_add_u32 v7, v2, 3, v4"); a("v_lshl_add_u32 v6, v7, 8, v6"); a("v_lshl_add_u32 v6, v5, 3, v6")
    for dt in range(4):
        a(f"v_xor_b32 v7, {dt << 5}, v6"); a(f"v_add_u32 v{vWA+dt}, {RING0+WOFF}, v7")
    attn_addrs()
    def qreads(sub, se):
        o = []
        for dt in range(4):
            for rho in range(2):
                o.append(f"ds_read_b64_tr_b16 {vr(SET[se]+4*dt+2*rho,2)}, v{vWA+dt} offset:{(32*sub+4*rho)*256}")
        b = [f"ds_read_b128 {vr(SET[se]+16+4*i,4)}, v{vXA+sub} offset:{2048*i}" for i in range(5)]
        return [o[0], o[1], b[0], b[1], o[2], o[3], b[2], o[4], o[5], b[3], o[6], o[7], b[4]]
    def qmfmas(se, zero=False):
        o = []
        for dt in range(4):
            for i in range(5):
                d = vr(ACC + 4*(dt*5+i), 4)
                o.append(f"v_mfma_f32_16x16x32_bf16 {d}, {vr(SET[se]+4*dt,4)}, {vr(SET[se]+16+4*i,4)}, {'0' if zero else d}")
        return o
    def ring_adv():
        s = [f"s_add_u32 s{sT2}, s{sT2}, 1", f"s_cmp_eq_u32 s{sT2}, 3", f"s_cselect_b32 s{sD}, -2, 1",
             f"s_cselect_b32 s{sT2}, 0, s{sT2}", f"s_mul_i32 s{sD}, s{sD}, {RSTRIDE}"]
        v = [f"v_add_u32 v{r}, s{sD}, v{r}" for r in list(range(vXA, vXA+2)) + list(range(vWA, vWA+4))]
        return s + v
    a(f"s_mov_b32 s{sT2}, 0"); a(f"s_mov_b32 s{sCnt}, 15")
    a("s_barrier")
    st.stamp()
    a.ext(qreads(0, 0)); a("s_waitcnt lgkmcnt(0)")
    a.ext(weave(qmfmas(0, True), merge(spread(qreads(1, 1), 20, 0, 13), spread(ring_adv(), 20, 14, 20))))
    a.label("K1_qloop")
    a("s_waitcnt lgkmcnt(0)"); a("s_barrier")
    a.ext(weave(qmfmas(1), spread(qreads(0, 0), 20, 0, 13)))
    a("s_waitcnt lgkmcnt(0)")
    a.ext(weave(qmfmas(0), merge(spread(qreads(1, 1), 20, 0, 13), spread(ring_adv() + [f"s_sub_u32 s{sCnt}, s{sCnt}, 1", f"s_cmp_lg_u32 s{sCnt}, 0"], 20, 14, 20))))
    a("s_cbranch_scc1 K1_qloop")
    a("s_waitcnt lgkmcnt(0)"); a("s_barrier")
    st.stamp()
    pre = [f"s_mov_b32 s{sSc}, {f32hex(math.log2(math.e)/math.sqrt(128.0))}",
           f"s_lshl_b32 s{sT2}, s{sT0}, 12",
           f"s_mul_i32 s{sT3}, s{sT1}, {16384+256}", f"s_add_u32 s{sT3}, s{sT3}, s{sT2}", f"s_add_u32 s{sT3}, s{sT3}, {QX}",
           f"s_mul_i32 s{sD}, s{sT1}, {24576-256}", f"s_add_u32 s{sD}, s{sD}, s{sT2}", f"s_add_u32 s{sD}, s{sD}, {QX+256}",
           "v_lshrrev_b32 v6, 1, v2", "v_lshlrev_b32 v6, 9, v6", "v_lshl_add_u32 v6, v3, 4, v6", "v_and_b32 v7, 1, v2",
           "v_lshl_add_u32 v6, v7, 3, v6", f"v_add_u32 v7, s{sD}, v6", f"v_add_u32 v6, s{sT3}, v6"]
    a.ext(weave(qmfmas(1), spread(pre, 20, 0, 16)))
    for dt in range(4):
        for i in range(5):
            r = ACC + 4*(dt*5+i); tmp = SET[0] + 2*((dt*5+i) % 8)
            if dt == 3 and i == 2: a("s_nop 0")
            for j in range(4): a(f"v_mul_f32 v{r+j}, s{sSc}, v{r+j}")
            a(f"v_cvt_pk_bf16_f32 v{tmp}, v{r}, v{r+1}"); a(f"v_cvt_pk_bf16_f32 v{tmp+1}, v{r+2}, v{r+3}")
            a(f"ds_write_b64 v{6 + (i & 1)}, {vr(tmp,2)} offset:{(i//2)*8192 + dt*1024}")
    for i in range(64): a(f"v_mov_b32 v{OO+i}, 0")
    a(f"v_mov_b32 v{vl0}, 0"); a(f"v_mov_b32 v{vl1}, 0")
    a(f"s_mov_b32 s{sKT}, {sum(KSLOT[t] << (4*t) for t in range(8))}")
    a(f"s_mov_b32 s{sVT}, {sum(VSLOT[t] << (4*t) for t in range(8))}")
    a(f"s_mov_b32 s{sKcur}, {KSLOT[0]*16384}"); a(f"s_mov_b32 s{sVcur}, {VSLOT[0]*16384}")
    assert KSLOT[0] == 0
    for t in range(4): a(f"v_add_u32 v{vVA+t}, s{sVcur}, v{vVA+t}")
    a(f"s_lshl_b32 s{sT2}, s{sW}, 13"); a(f"s_add_u32 s{sT2}, s{sT2}, {QX}")
    a(f"v_lshlrev_b32 v6, 4, v{vL}"); a(f"v_add_u32 v7, s{sT2}, v6")
    a("s_waitcnt lgkmcnt(0)"); a("s_barrier")
    st.stamp()
    kr = kreads(0)
    for s in range(8):
        a(f"ds_read_b128 {vr(vQ+4*s,4)}, v7 offset:{s*1024}"); a(kr[s])
        if s == 6: a("s_waitcnt lgkmcnt(8)")
    m = s_mfmas(SS[0], "0"); kr = kreads(1)
    a("s_waitcnt lgkmcnt(0)")
    a.ext(weave(m, [[kr[s]] for s in range(8)]))
    a.c("---- slot 0")
    ks, kv_ = rebase(sKT, sKcur, vKA, 8)
    a("s_waitcnt lgkmcnt(0)"); a("s_barrier")
    m = s_mfmas(SS[1], "0"); kr = kreads(0)
    fm = first_max_ops(SS[0])
    a.ext(ks)
    g = [[kv_[s], kr[s]] for s in range(8)]
    g = merge(g, spread(fm[:30], 8, 3, 8))
    a.ext(weave(m, g))
    vrd = [x for p in vreads(0) for x in p]
    rest = fm[30:] + sm_ops(SS[0], PP[0])
    for i, x in enumerate(rest):
        a(x)
        if i < 16: a(vrd[i])
    for i in range(16): a(f"v_sub_f32 v{SS[1]+i}, v{SS[1]+i}, v{vMX}")

    def slot(par, tag, has_s=True, barrier=False, readk=True, extra_tail=None):
        sub = par
        ms = s_mfmas(SS[1-par], vr(NEGM, 16)) if has_s else []
        mp = pv_mfmas(PP[1-par])
        mx = max_ops(SS[par]); ck = check_ops(par, tag); sm = sm_ops(SS[par], PP[par])
        kr = kreads(sub); vr_ = vreads(sub)
        if has_s:
            g = [[] for _ in range(16)]
            g[0] += mx[:4]; g[1] += mx[4:]; g[2] += ck
            if barrier:
                ks, kv_ = rebase(sKT, sKcur, vKA, 8)
                vs, vv_ = rebase(sVT, sVcur, vVA, 4)
                g[0] += ks[:3]; g[1] += ks[3:]
                g[2] += ["s_waitcnt lgkmcnt(0)", "s_barrier"]
                g[2] += [kv_[0], kr[0], kv_[1], kr[1]]
                g[3] += [kv_[2], kr[2], kv_[3], kr[3]]
                for s in range(4, 8): g[s] += [kv_[s], kr[s]]
                g[7] += vs
                g[7] += vv_
            else:
                for s in range(8): g[s] += [kr[s]]
            g[7] += ["s_waitcnt lgkmcnt(8)"] if not barrier else []
            smg = spread(sm, 16, 3, 16)
            g = merge(g, smg)
            for i in range(8): g[8+i] += vr_[i]
            if extra_tail: g[15] += extra_tail
            a("s_waitcnt lgkmcnt(15)")
            a.ext(weave(ms + mp, g))
        else:
            g = [[] for _ in range(8)]
            a.ext(mx); a.ext(ck)
            a("s_waitcnt lgkmcnt(0)")
            g = merge(g, spread(sm, 8, 0, 8))
            for i in range(8): g[i] += vr_[i]
            a.ext(weave(mp, g))
    a(f"s_mov_b32 s{sCnt}, 7")
    a.label("K1_aloop")
    slot(1, "odd")
    slot(0, "even", barrier=True, extra_tail=[f"s_sub_u32 s{sCnt}, s{sCnt}, 1", f"s_cmp_lg_u32 s{sCnt}, 0"])
    a("s_cbranch_scc1 K1_aloop")
    st.stamp()
    slot(1, "last", has_s=False)
    a("s_waitcnt lgkmcnt(0)"); a("s_barrier")
    fin = [f"v_add_f32 v{vl0}, v{vl0}, v{vl1}"] + xhalf("v_add_f32", vl0) + [f"v_rcp_f32 v{vl0}, v{vl0}"]
    fin += [f"s_mul_i32 s{sOb}, s{sB}, 5", f"s_add_u32 s{sOb}, s{sOb}, s{sW}", f"s_lshl_b32 s{sOb}, s{sOb}, 18",
            f"s_lshl_b32 s{sT0}, s{sH}, 13", f"s_add_u32 s{sOb}, s{sOb}, s{sT0}", f"s_add_u32 s{sOb2}, s{sOb}, 4096",
            f"v_lshlrev_b32 v6, 4, v{vL}"]
    a.ext(weave(pv_mfmas(PP[1]), spread(fin, 8, 0, 8)))
    ont = " nt" if cfg.o_nt else ""
    a("s_nop 7")
    for t in range(4):
        for i in range(16): a(f"v_mul_f32 v{OO+16*t+i}, v{vl0}, v{OO+16*t+i}")
        for j in range(8): a(f"v_cvt_pk_bf16_f32 v{KF+8*t+j}, v{OO+16*t+2*j}, v{OO+16*t+2*j+1}")
        for j in range(2):
            blk = 2*t + j
            a(f"buffer_store_dwordx4 {vr(KF+8*t+4*j,4)}, v6, s[{SWS}:{SWS+3}], s{sOb if blk < 4 else sOb2} offen offset:{(blk % 4)*1024}{ont}")
    if cfg.stamps:
        a("s_waitcnt vmcnt(0)")
    st.stamp()
    st.flush(SWS, sW, 0)
    a("s_endpgm")

    a.label("K1_helper")
    st = Stamper(a, cfg); st.n = 1
    vGX, vGW0, vGW1, vGK, vGV = 8, 9, 10, 11, 12
    a(f"s_sub_u32 s{sHW}, s{sW}, 4")
    a(f"s_and_b32 s{sT0}, s{sHW}, 1"); a(f"s_lshl_b32 s{sT0}, s{sT0}, 2")
    a(f"v_and_b32 v6, 7, v{vL}"); a("v_xor_b32 v6, v6, v2"); a(f"v_xor_b32 v6, s{sT0}, v6"); a("v_lshlrev_b32 v6, 4, v6")
    a(f"v_lshrrev_b32 v7, 3, v{vL}"); a(f"v_lshl_add_u32 v{vGX}, v7, 11, v6")
    a(f"s_mul_i32 s{sXo}, s{sB}, {160*2048}"); a(f"s_lshl_b32 s{sT1}, s{sHW}, 14"); a(f"s_add_u32 s{sXo}, s{sXo}, s{sT1}")
    a(f"s_lshr_b32 s{sT0}, s{sHW}, 1"); a(f"s_lshl_b32 s{sT0}, s{sT0}, 3")
    a("v_lshlrev_b32 v6, 1, v2"); a("v_xor_b32 v6, v6, v3"); a(f"v_xor_b32 v6, s{sT0}, v6"); a("v_lshlrev_b32 v6, 4, v6")
    a(f"v_lshl_add_u32 v{vGW0}, v2, 13, v6")
    a(f"s_lshl_b32 s{sWo}, s{sH}, 8"); a(f"s_lshl_b32 s{sT1}, s{sHW}, 15"); a(f"s_add_u32 s{sWo}, s{sWo}, s{sT1}")
    vm = VmTrack()
    def issue_stage(s):
        base = RING0 + (s % 3) * RSTRIDE
        a(f"s_add_u32 s{sT0}, s{sRot}, {s}"); a(f"s_and_b32 s{sT0}, s{sT0}, 15")
        a(f"s_lshl_b32 s{sT1}, s{sT0}, 7"); a(f"s_add_u32 s{sT1}, s{sT1}, s{sXo}")
        a(f"s_lshl_b32 s{sT2}, s{sT0}, 19"); a(f"s_add_u32 s{sT2}, s{sT2}, s{sWo}")
        a(f"s_lshl_b32 s{sT3}, s{sHW}, 10")
        order = [("w", 0), ("x", 0), ("x", 1), ("w", 1), ("x", 2), ("w", 2), ("x", 3), ("w", 3), ("x", 4)]
        for kind, i in order:
            if kind == "x":
                a(f"s_add_u32 m0, s{sT3}, {base + i*4096}")
                a(f"s_add_u32 s{sD}, s{sT1}, {i*65536}")
                a(f"buffer_load_dwordx4 v{vGX}, s[{SX}:{SX+3}], s{sD} offen{xwnt} lds")
            else:
                a(f"s_add_u32 m0, s{sT3}, {base + WOFF + i*4096}")
                a(f"s_add_u32 s{sD}, s{sT2}, {i*131072}")
                a(f"buffer_load_dwordx4 v{vGW0}, s[{SWQ}:{SWQ+3}], s{sD} offen{xwnt} lds")
            vm.issue(("st", s))
    for s in range(3):
        issue_stage(s)
        if s == 0:
            a(f"s_lshl_b32 s{sT0}, s{sHW}, 2")
            a("v_xor_b32 v6, v3, v2"); a(f"v_xor_b32 v6, s{sT0}, v6"); a("v_lshlrev_b32 v6, 4, v6"); a(f"v_lshl_add_u32 v{vGK}, v2, 8, v6")
            a("v_lshlrev_b32 v6, 2, v2"); a("v_xor_b32 v6, v6, v3"); a("v_lshlrev_b32 v6, 4, v6"); a(f"v_lshl_add_u32 v{vGV}, v2, 8, v6")
            a(f"s_lshl_b32 s{sKV}, s{sB}, 5"); a(f"s_add_u32 s{sKV}, s{sKV}, s{sH}"); a(f"s_lshl_b32 s{sKV}, s{sKV}, 17")
            a(f"s_lshl_b32 s{sT0}, s{sHW}, 10"); a(f"s_add_u32 s{sKV}, s{sKV}, s{sT0}")
    QORD = [("K",0),("K",1),("V",0),("K",2),("V",1),("K",3),("V",2),("K",4),("V",3),("K",5),("V",4),("K",6),("V",5),("K",7),("V",6),("V",7)]
    def issue_kv(q, i):
        kind, t = QORD[q]
        slot_ = (KSLOT if kind == "K" else VSLOT)[t]
        a(f"s_lshl_b32 s{sT3}, s{sHW}, 10")
        a(f"s_add_u32 m0, s{sT3}, {slot_*16384 + i*4096}")
        a(f"s_add_u32 s{sD}, s{sKV}, {t*16384 + i*4096}")
        if kind == "K": a(f"buffer_load_dwordx4 v{vGK}, s[{SK}:{SK+3}], s{sD} offen{kvnt} lds")
        else: a(f"buffer_load_dwordx4 v{vGV}, s[{SV}:{SV+3}], s{sD} offen{kvnt} lds")
        vm.issue(("kv", q))
    def issue_q(q):
        for i in range(4): issue_kv(q, i)
    attn_addrs(sHW)
    for i in range(64): a(f"v_mov_b32 v{OO+i}, 0")
    a(f"v_mov_b32 v{vl0}, 0"); a(f"v_mov_b32 v{vl1}, 0")
    pre = [(q, i) for q in range(3) for i in range(4)]
    for s in range(17):
        if s < 16: a(f"s_waitcnt vmcnt({vm.wait(('st', s))})")
        a("s_barrier")
        if s >= 1 and s + 2 <= 15: issue_stage(s + 2)
        if s >= cfg.kv_start and pre:
            issue_kv(*pre.pop(0))
        if s == 13:
            while pre: issue_kv(*pre.pop(0))
        if s == 14: issue_q(3)
        if s == 15: issue_q(4); issue_q(5); issue_q(6)
    st.stamp()
    a(f"v_lshlrev_b32 v6, 4, v{vL}"); a(f"v_add_u32 v7, {QX + 4*8192}, v6")
    a(f"s_mov_b32 s{sKcur}, 0"); a(f"s_mov_b32 s{sVcur}, 0")
    a(f"s_and_b32 s{sT0}, s{sHW}, 1"); a(f"s_lshl_b32 s{sT0}, s{sT0}, 13")
    for s in range(8): a(f"v_add_u32 v{vKA+s}, s{sT0}, v{vKA+s}")
    for t in range(4): a(f"v_add_u32 v{vVA+t}, s{sT0}, v{vVA+t}")
    a(f"s_waitcnt vmcnt({vm.wait(('kv', 0))})")
    a("s_barrier")
    for s in range(8): a(f"ds_read_b128 {vr(vQ+4*s,4)}, v7 offset:{s*1024}")
    later = {1: [7, 8, 9], 2: [10, 11], 3: [12, 13], 4: [14, 15]}
    def hrebase(tab, p, cur, addr, n):
        a(f"s_cmp_ge_u32 s{sHW}, 2"); a(f"s_cselect_b32 s{sN}, {tab[2*p+1]}, {tab[2*p]}"); a(f"s_lshl_b32 s{sN}, s{sN}, 14")
        a(f"s_sub_u32 s{sD}, s{sN}, s{cur}"); a(f"s_mov_b32 s{cur}, s{sN}")
        for i in range(n): a(f"v_add_u32 v{addr+i}, s{sD}, v{addr+i}")
    for t in range(1, 9):
        p = (t - 1) // 2
        if t % 2 == 1: hrebase(KSLOT, p, sKcur, vKA, 8)
        else: hrebase(VSLOT, p, sVcur, vVA, 4)
        a(f"s_waitcnt vmcnt({vm.wait(('kv', min(2*t, 15)))}) lgkmcnt(0)")
        a("s_barrier")
        if t % 2 == 1:
            a.ext(kreads(0))
            for q in later.get(t, []): issue_q(q)
            m = s_mfmas(SS[0], "0" if p == 0 else vr(NEGM, 16))
            a("s_waitcnt lgkmcnt(0)")
            a.ext(m)
            a("s_nop 11")
            if p == 0: a.ext(first_max_ops(SS[0]))
            else: a.ext(max_ops(SS[0])); a.ext(check_ops(0, f"h{p}"))
            a.ext(sm_ops(SS[0], PP[0]))
        else:
            vrd = [x for pr in vreads(0) for x in pr]
            a.ext(vrd[:12]); a("s_waitcnt lgkmcnt(4)"); a.ext(vrd[12:])
            for q in later.get(t, []): issue_q(q)
            a("s_waitcnt lgkmcnt(0)")
            a.ext(pv_mfmas(PP[0]))
    st.stamp()
    a.c("---- combine the four key-quarters of q-tile 4")
    a(f"v_add_f32 v{vl0}, v{vl0}, v{vl1}"); a.ext(xhalf("v_add_f32", vl0))
    a(f"v_sub_f32 v{vl1}, 0, v{NEGM}")
    a(f"s_lshl_b32 s{sT0}, s{sHW}, 9"); a(f"s_add_u32 s{sT0}, s{sT0}, {CML}")
    a(f"v_lshlrev_b32 v7, 3, v{vL}"); a(f"v_add_u32 v2, s{sT0}, v7")
    a(f"ds_write_b64 v2, {vr(vl0,2)}")
    a(f"v_lshlrev_b32 v6, 4, v{vL}")
    for tau in range(1, 4):
        a(f"s_xor_b32 s{sT0}, s{sHW}, {tau}"); a(f"s_mul_i32 s{sT0}, s{sT0}, {3*4096}"); a(f"s_add_u32 s{sT0}, s{sT0}, {COMB + (tau-1)*4096}")
        a(f"v_add_u32 v{2+tau}, s{sT0}, v6")
    for tau in range(1, 4):
        for j in range(4):
            a(f"ds_write_b128 v{2+tau}, {vr(OO+16*tau+4*j,4)} offset:{j*1024}")
    a(f"s_mul_i32 s{sT0}, s{sHW}, {3*4096}"); a(f"s_add_u32 s{sT0}, s{sT0}, {COMB}")
    a(f"v_add_u32 v3, s{sT0}, v6")
    a("s_waitcnt lgkmcnt(0)"); a("s_barrier")
    ML = SS[0]
    for tau in range(1, 4):
        a(f"v_xor_b32 v4, {tau << 9}, v2")
        a(f"ds_read_b64 {vr(ML+2*tau,2)}, v4")
    for tau in range(1, 4):
        for j in range(4):
            a(f"ds_read_b128 {vr(OO+16*tau+4*j,4)}, v3 offset:{(tau-1)*4096 + j*1024}")
    a(f"v_mov_b32 v{ML}, v{vl0}"); a(f"v_mov_b32 v{ML+1}, v{vl1}")
    a(f"s_mul_i32 s{sOb}, s{sB}, 5"); a(f"s_add_u32 s{sOb}, s{sOb}, 4"); a(f"s_lshl_b32 s{sOb}, s{sOb}, 18")
    a(f"s_lshl_b32 s{sT0}, s{sH}, 13"); a(f"s_add_u32 s{sOb}, s{sOb}, s{sT0}")
    a(f"s_lshl_b32 s{sT0}, s{sHW}, 11"); a(f"s_add_u32 s{sOb}, s{sOb}, s{sT0}")
    a("s_waitcnt lgkmcnt(12)")
    a(f"v_max3_f32 v{vMX}, v{ML+1}, v{ML+3}, v{ML+5}"); a(f"v_max_f32 v{vMX}, v{vMX}, v{ML+7}")
    for tau in range(4): a(f"v_sub_f32 v{ML+2*tau+1}, v{ML+2*tau+1}, v{vMX}")
    for tau in range(4): a(f"v_exp_f32 v{ML+2*tau+1}, v{ML+2*tau+1}")
    a("s_nop 0")
    a(f"v_mul_f32 v{vT0}, v{ML}, v{ML+1}")
    for tau in range(1, 4): a(f"v_fmac_f32 v{vT0}, v{ML+2*tau}, v{ML+2*tau+1}")
    a(f"v_rcp_f32 v{vT0}, v{vT0}"); a("s_nop 0")
    for tau in range(4): a(f"v_mul_f32 v{ML+2*tau+1}, v{ML+2*tau+1}, v{vT0}")
    for i in range(16): a(f"v_mul_f32 v{OO+i}, v{ML+1}, v{OO+i}")
    for tau in range(1, 4):
        a(f"s_waitcnt lgkmcnt({(3-tau)*4})")
        for i in range(16): a(f"v_fmac_f32 v{OO+i}, v{ML+2*tau+1}, v{OO+16*tau+i}")
    for j in range(8): a(f"v_cvt_pk_bf16_f32 v{KF+j}, v{OO+2*j}, v{OO+2*j+1}")
    for j in range(2):
        a(f"buffer_store_dwordx4 {vr(KF+4*j,4)}, v6, s[{SWS}:{SWS+3}], s{sOb} offen offset:{j*1024}{ont}")
    if cfg.stamps:
        a("s_waitcnt vmcnt(0)")
    st.stamp()
    st.flush(SWS, sW, 0)
    a.label("K1_end")
    a("s_endpgm")

    for tag, par in tramps:
        a.label(f"K1_tr_{tag}")
        a(f"s_call_b64 s[{sRet}:{sRet+1}], K1_rare{par}")
        a(f"s_branch K1_bk_{tag}")
    for par in range(2):
        a.label(f"K1_rare{par}")
        a("s_nop 15")
        a.ext(xhalf("v_max_f32", vMX))
        a(f"v_max_f32 v{vMX}, 0, v{vMX}"); a(f"v_ceil_f32 v{vMX}, v{vMX}")
        a(f"v_sub_f32 v{vT0}, 0, v{vMX}"); a(f"v_exp_f32 v{vT0}, v{vT0}")
        for i in range(16):
            a(f"v_sub_f32 v{SS[0]+i}, v{SS[0]+i}, v{vMX}"); a(f"v_sub_f32 v{SS[1]+i}, v{SS[1]+i}, v{vMX}")
            a(f"v_sub_f32 v{NEGM+i}, v{NEGM+i}, v{vMX}")
        for i in range(64): a(f"v_mul_f32 v{OO+i}, v{vT0}, v{OO+i}")
        a(f"v_mul_f32 v{vl0}, v{vT0}, v{vl0}"); a(f"v_mul_f32 v{vl1}, v{vT0}, v{vl1}")
        P = PP[1-par]
        for j in range(8):
            a(f"v_lshlrev_b32 v{vT1}, 16, v{P+j}"); a(f"v_and_b32 v{vT2}, 0xffff0000, v{P+j}")
            a(f"v_mul_f32 v{vT1}, v{vT0}, v{vT1}"); a(f"v_mul_f32 v{vT2}, v{vT0}, v{vT2}")
            a(f"v_cvt_pk_bf16_f32 v{P+j}, v{vT1}, v{vT2}")
        a("s_nop 1")
        a(f"s_setpc_b64 s[{sRet}:{sRet+1}]")

def gen_k2(a, cfg, name):
    SWO, SOUT, SWS = 8, 12, 16
    sW, sMT, sNT = 20, 21, 22
    sO, sWk, sM0, sCnt, sT0, sT1, sJ = 23, 24, 25, 26, 27, 28, 29
    vL = 1; vOA = 8; vWG = 13; vTA = 17
    AS = [24, 40]; BR = 56; ACC = 136
    NB = 4; RED = 65536
    st = Stamper(a, cfg)
    wnt = " nt" if cfg.wo_nt else ""
    kstart(a, name)
    a("s_cmp_ge_u32 s2, 256"); a("s_cbranch_scc1 K2_end")
    st.stamp()
    a("s_load_dwordx4 s[32:35], s[0:1], 32")
    a("s_load_dwordx2 s[36:37], s[0:1], 56")
    a("v_lshrrev_b32 v2, 6, v0"); a(f"v_and_b32 v{vL}, 63, v0")
    a(f"v_readfirstlane_b32 s{sW}, v2")
    a("s_and_b32 s3, s2, 7"); a("s_lshr_b32 s4, s2, 3")
    a("s_lshr_b32 s5, s3, 1"); a("s_lshl_b32 s5, s5, 2"); a("s_and_b32 s6, s4, 3"); a(f"s_add_u32 s{sMT}, s5, s6")
    a("s_and_b32 s5, s3, 1"); a("s_lshl_b32 s5, s5, 3"); a("s_lshr_b32 s6, s4, 2"); a(f"s_add_u32 s{sNT}, s5, s6")
    a(f"v_lshrrev_b32 v2, 4, v{vL}"); a(f"v_and_b32 v3, 15, v{vL}"); a(f"v_bfe_u32 v4, v{vL}, 2, 2"); a(f"v_and_b32 v5, 3, v{vL}")
    a("v_lshlrev_b32 v6, 9, v2"); a("v_lshl_add_u32 v6, v3, 4, v6")
    a(f"s_mul_i32 s{sT0}, s{sMT}, 5")
    for i in range(5):
        a(f"s_add_u32 s3, s{sT0}, {i}"); a("s_and_b32 s4, s3, 1"); a("s_lshl_b32 s4, s4, 8"); a("s_lshr_b32 s3, s3, 1"); a("s_lshl_b32 s3, s3, 18")
        a("s_add_u32 s3, s3, s4"); a(f"v_add_u32 v{vOA+i}, s3, v6")
    a(f"v_and_b32 v6, 7, v{vL}"); a("v_lshlrev_b32 v7, 1, v2"); a("v_xor_b32 v6, v6, v7"); a("v_lshlrev_b32 v6, 4, v6")
    a(f"v_lshrrev_b32 v7, 3, v{vL}"); a("v_lshl_add_u32 v6, v7, 11, v6")
    a(f"s_lshl_b32 s3, s{sNT}, 7")
    for j in range(4):
        a(f"s_add_u32 s4, s3, {j*(16384-1024)}"); a(f"v_add_u32 v{vWG+j}, s4, v6")
    a("v_lshrrev_b32 v6, 1, v2"); a("v_lshlrev_b32 v6, 4, v6"); a("v_and_b32 v7, 1, v2"); a("v_lshl_add_u32 v6, v7, 2, v6"); a("v_add_u32 v6, v6, v4")
    a("v_lshlrev_b32 v6, 7, v6"); a("v_lshl_add_u32 v6, v5, 3, v6")
    a("v_lshlrev_b32 v7, 1, v7"); a("v_lshrrev_b32 v21, 1, v4"); a("v_add_u32 v7, v7, v21"); a(f"v_xor_b32 v7, s{sW}, v7")
    a("v_lshl_add_u32 v6, v7, 5, v6")
    a(f"s_lshl_b32 s{sM0}, s{sW}, 14")
    for u in range(4):
        a(f"v_xor_b32 v7, {u << 5}, v6"); a(f"v_add_u32 v{vTA+u}, s{sM0}, v7")
    a("s_waitcnt lgkmcnt(0)")
    srd(a, SWO, 32, 1 << 23); srd(a, SOUT, 34, 8*160*1024*2); srd(a, SWS, 36, (1 << 28) if cfg.stamps else O_BYTES)
    if cfg.k2_rot:
        a("s_lshr_b32 s4, s2, 3"); a(f"s_mov_b32 s{sJ}, s4")
    else:
        a(f"s_mov_b32 s{sJ}, 0")
    def step_pre(slot_):
        return [f"s_and_b32 s{sT0}, s{sJ}, 31", f"s_lshl_b32 s{sT1}, s{sW}, 5", f"s_add_u32 s{sT0}, s{sT0}, s{sT1}",
                f"s_lshl_b32 s{sO}, s{sT0}, 11", f"s_lshl_b32 s{sWk}, s{sT0}, 16", f"s_add_u32 m0, s{sM0}, {slot_*4096}",
                f"s_add_u32 s{sJ}, s{sJ}, 1"]
    def oload(slot_, i): return f"buffer_load_dwordx4 {vr(BR+20*slot_+4*i,4)}, v{vOA+i}, s[{SWS}:{SWS+3}], s{sO} offen"
    def wload(j): return f"buffer_load_dwordx4 v{vWG+j}, s[{SWO}:{SWO+3}], s{sWk} offen offset:{j*1024}{wnt} lds"
    def treads(slot_, se):
        return [f"ds_read_b64_tr_b16 {vr(AS[se]+4*u+2*rho,2)}, v{vTA+u} offset:{slot_*4096+rho*1024}" for u in range(4) for rho in range(2)]
    def mfmas(slot_, se, zero=False):
        o = []
        for i in range(5):
            for u in range(4):
                d = vr(ACC + 4*(i*4+u), 4)
                o.append(f"v_mfma_f32_16x16x32_bf16 {d}, {vr(AS[se]+4*u,4)}, {vr(BR+20*slot_+4*i,4)}, {'0' if zero else d}")
        return o
    for s in range(NB):
        a.ext(step_pre(s))
        for j in range(4): a(wload(j))
        for i in range(5): a(oload(s, i))
    for i in range(80): a(f"v_mov_b32 v{ACC+i}, 0")
    a(f"s_waitcnt vmcnt({9*(NB-1)})")
    st.stamp()
    a.ext(treads(0, 0))
    def step(jm, loads, nextread, vmw):
        g = [[] for _ in range(20)]
        if nextread:
            a(f"s_waitcnt vmcnt({vmw}) lgkmcnt(0)")
            g = merge(g, spread(treads((jm+1) % NB, (jm+1) % 2), 20, 0, 8))
        else:
            a("s_waitcnt lgkmcnt(0)")
        if loads:
            pre = step_pre(jm)
            g[0] += pre[:4]; g[1] += pre[4:]
            for j in range(4): g[2 + 4*j] += [wload(j)]
            for i in range(5): g[4*i + 3] += [oload(jm, i)]
        return g
    a(f"s_mov_b32 s{sCnt}, 7")
    a.label("K2_loop")
    for jm in range(4):
        g = step(jm, True, True, 9*(NB-2))
        if jm == 3: g[17] += [f"s_sub_u32 s{sCnt}, s{sCnt}, 1", f"s_cmp_lg_u32 s{sCnt}, 0"]
        a.ext(weave(mfmas(jm, jm % 2), g))
    a("s_cbranch_scc1 K2_loop")
    for jm in range(4):
        g = step(jm, False, jm < 3, 9*max(0, 2-jm))
        a.ext(weave(mfmas(jm, jm % 2), g))
    st.stamp()
    a.c("---- cross-wave reduction")
    a(f"v_lshlrev_b32 v6, 4, v{vL}")
    for up in range(1, 4):
        a(f"s_xor_b32 s{sT0}, s{sW}, {up}"); a(f"s_mul_i32 s{sT0}, s{sT0}, 15360"); a(f"s_add_u32 s{sT0}, s{sT0}, {RED + (up-1)*5120}")
        a(f"v_add_u32 v{8+up}, s{sT0}, v6")
    a(f"s_mul_i32 s{sT0}, s{sW}, 15360"); a(f"s_add_u32 s{sT0}, s{sT0}, {RED}"); a(f"v_add_u32 v8, s{sT0}, v6")
    for i in range(5):
        for up in range(1, 4):
            a(f"ds_write_b128 v{8+up}, {vr(ACC+4*(i*4+up),4)} offset:{i*1024}")
    a(f"s_mul_i32 s{sT0}, s{sMT}, {80*2048}"); a(f"s_lshl_b32 s{sT1}, s{sNT}, 7"); a(f"s_add_u32 s{sT0}, s{sT0}, s{sT1}")
    a(f"s_lshl_b32 s{sT1}, s{sW}, 5"); a(f"s_add_u32 s{sT0}, s{sT0}, s{sT1}")
    a("v_lshlrev_b32 v7, 11, v3"); a("v_lshl_add_u32 v7, v2, 3, v7")
    a("s_waitcnt lgkmcnt(0)"); a("s_barrier")
    for i in range(5):
        for up in range(1, 4):
            a(f"ds_read_b128 {vr(ACC+4*(i*4+up),4)}, v8 offset:{(up-1)*5120 + i*1024}")
    for i in range(5):
        a(f"s_waitcnt lgkmcnt({(4-i)*3})")
        r = ACC + 16*i
        for j in range(4): a(f"v_add_f32 v{r+j}, v{r+j}, v{r+4+j}")
        for j in range(4): a(f"v_add_f32 v{r+8+j}, v{r+8+j}, v{r+12+j}")
        for j in range(4): a(f"v_add_f32 v{r+j}, v{r+j}, v{r+8+j}")
        a(f"v_cvt_pk_bf16_f32 v{24+2*i}, v{r}, v{r+1}"); a(f"v_cvt_pk_bf16_f32 v{25+2*i}, v{r+2}, v{r+3}")
        a(f"buffer_store_dwordx2 {vr(24+2*i,2)}, v7, s[{SOUT}:{SOUT+3}], s{sT0} offen")
        a(f"s_add_u32 s{sT0}, s{sT0}, 32768")
    if cfg.stamps:
        a("s_waitcnt vmcnt(0)")
    st.stamp()
    st.flush(SWS, sW, 1)
    a.label("K2_end")
    a("s_endpgm")

def build(cfg):
    a = Asm()
    n1 = "standalone__mha_block_cached__near_ridge_kernel"; n2 = "mha_oproj_kernel"
    a(f"; @launch kernel={n1} grid=(256,1,1) block=(512,1,1) lds=163840")
    a(f"; @launch kernel={n2} grid=(256,1,1) block=(256,1,1) lds=131072")
    a(HEAD)
    gen_k1(a, cfg, n1)
    gen_k2(a, cfg, n2)
    a('.section .rodata,"a"')
    kdesc(a, n1, 256, 96); kdesc(a, n2, 256, 96)
    return a.text()

if __name__ == "__main__":
    cfg = Cfg()
    out = sys.argv[1]
    for kv in sys.argv[2:]:
        k, v = kv.split("=")
        setattr(cfg, k, type(getattr(Cfg, k))(eval(v)))
    t = build(cfg)
    errs, n = check(t)
    for e in errs: print("HAZARD", e)
    open(out, "w").write(t)
    print(f"wrote {out}: {n} instrs, {len(t)} bytes, {len(errs)} hazards")
```

```python
import sys, math, struct
from asmlib import *

def f32hex(x): return "0x%08x" % struct.unpack("<I", struct.pack("<f", x))[0]

class Cfg:
    kv_nt = False
    xw_nt = False
    wo_nt = False
    o_nt = False
    rot = True
    stamps = False
    thr = 8.0
    kv_start = 2
    k2_rot = False
    probe = ''

HEAD = """.amdgcn_target "amdgcn-amd-amdhsa--gfx950"
.text"""

def kstart(a, name):
    a(f".globl {name}"); a(".p2align 8"); a(f".type {name},@function"); a.label(name)

def kdesc(a, name, vgpr=256, sgpr=96):
    a(".p2align 6")
    a(f".amdhsa_kernel {name}")
    a(f"  .amdhsa_next_free_vgpr {vgpr}"); a(f"  .amdhsa_next_free_sgpr {sgpr}"); a(f"  .amdhsa_accum_offset {(vgpr+3)//4*4}")
    a("  .amdhsa_group_segment_fixed_size 0"); a("  .amdhsa_kernarg_size 64"); a("  .amdhsa_user_sgpr_count 2")
    a("  .amdhsa_user_sgpr_kernarg_segment_ptr 1"); a("  .amdhsa_system_sgpr_workgroup_id_x 1")
    a(".end_amdhsa_kernel")

def srd(a, d, b, size):
    a(f"s_mov_b32 s{d}, s{b}"); a(f"s_mov_b32 s{d+1}, s{b+1}"); a(f"s_mov_b32 s{d+2}, {size}"); a(f"s_mov_b32 s{d+3}, 0x20000")

STAMP_BASE = 64 << 20
class Stamper:
    def __init__(self, a, cfg, first=64):
        self.a = a; self.on = cfg.stamps; self.n = 0; self.first = first
    def stamp(self):
        if not self.on: return
        r = self.first + 4*self.n
        assert r + 3 < 100
        self.a(f"s_memrealtime s[{r}:{r+1}]"); self.a(f"s_memtime s[{r+2}:{r+3}]"); self.n += 1
    def flush(self, srdreg, widreg, kern):
        if not self.on: return
        a = self.a
        a("s_waitcnt lgkmcnt(0)")
        a(f"s_lshl_b32 s3, s2, 3"); a(f"s_add_u32 s3, s3, s{widreg}"); a("s_lshl_b32 s3, s3, 7")
        a(f"s_add_u32 s3, s3, {STAMP_BASE + kern*(1<<20)}")
        a("v_mov_b32 v2, 0")
        for i in range(self.n):
            a(f"v_mov_b32 v3, s{self.first+4*i}")
            a(f"buffer_store_dword v3, v2, s[{srdreg}:{srdreg+3}], s3 offen offset:{4*i}")
            a(f"v_mov_b32 v3, s{self.first+4*i+2}")
            a(f"buffer_store_dword v3, v2, s[{srdreg}:{srdreg+3}], s3 offen offset:{64+4*i}")
        a("s_waitcnt vmcnt(0)")

class VmTrack:
    def __init__(self): self.tags = []
    def issue(self, tag): self.tags.append(tag)
    def wait(self, tag):
        last = max(i for i, t in enumerate(self.tags) if t == tag)
        return min(63, len(self.tags) - 1 - last)

KSLOT = [0, 1, 6, 8, 3, 5, 1, 7]
VSLOT = [2, 7, 9, 4, 0, 2, 6, 8]
RING0 = 48 * 1024; RSTRIDE = 36 * 1024; WOFF = 20480
QX = 48 * 1024
COMB = 3 * 16384; CML = 9 * 16384
O_BYTES = 1280 * 4096 * 2

def gen_k1(a, cfg, name):
    SX, SK, SV, SWQ, SWS = 8, 12, 16, 20, 24
    sW, sB, sH, sHW = 28, 29, 30, 31
    sT = 32; sKT = 33; sVT = 34; sKcur = 35; sVcur = 36; sD = 37; sCnt = 38; sN = 39
    sRet = 40
    sT0, sT1, sT2, sT3 = 42, 43, 44, 45
    sKV = 46; sXo = 47; sWo = 48; sRot = 49; sOb = 50; sOb2 = 51; sSc = 52
    vL = 1
    vXA = 8; vWA = 10
    vl0, vl1 = 14, 15
    vKA = 16; vVA = 24
    vMX = 28; vT0, vT1, vT2 = 29, 30, 31
    SET = [32, 68]
    ACC = 176
    vQ = 32; SS = [64, 80]; NEGM = 96; PP = [112, 120]; KF = 128; VF = 160; OO = 192
    st = Stamper(a, cfg)
    kvnt = " nt" if cfg.kv_nt else ""
    xwnt = " nt" if cfg.xw_nt else ""

    kstart(a, name)
    a("s_cmp_ge_u32 s2, 256"); a("s_cbranch_scc1 K1_end")
    st.stamp()
    a("s_load_dwordx4 s[52:55], s[0:1], 0")
    a("s_load_dwordx4 s[56:59], s[0:1], 16")
    a("s_load_dwordx2 s[60:61], s[0:1], 56")
    a("v_lshrrev_b32 v2, 6, v0"); a(f"v_and_b32 v{vL}, 63, v0")
    a(f"v_readfirstlane_b32 s{sW}, v2")
    a("s_and_b32 s3, s2, 7"); a("s_lshr_b32 s4, s2, 3")
    a("s_and_b32 s5, s3, 1"); a("s_lshl_b32 s5, s5, 2"); a("s_and_b32 s6, s4, 3"); a(f"s_add_u32 s{sB}, s5, s6")
    a("s_lshr_b32 s5, s3, 1"); a("s_lshl_b32 s5, s5, 3"); a("s_lshr_b32 s7, s4, 2"); a(f"s_add_u32 s{sH}, s5, s7")
    if cfg.rot:
        a("s_lshl_b32 s6, s6, 1"); a("s_add_u32 s6, s6, s7"); a("s_and_b32 s6, s6, 7"); a(f"s_lshl_b32 s{sRot}, s6, 1")
    else:
        a(f"s_mov_b32 s{sRot}, 0")
    a("s_waitcnt lgkmcnt(0)")
    srd(a, SX, 52, 8*160*1024*2); srd(a, SK, 54, 1 << 25); srd(a, SV, 56, 1 << 25); srd(a, SWQ, 58, 1 << 23)
    srd(a, SWS, 60, (1 << 28) if cfg.stamps else O_BYTES)
    a(f"s_mov_b32 s{sT}, {f32hex(cfg.thr)}")
    a(f"v_lshrrev_b32 v2, 4, v{vL}"); a(f"v_and_b32 v3, 15, v{vL}"); a(f"v_bfe_u32 v4, v{vL}, 2, 2"); a(f"v_and_b32 v5, 3, v{vL}")
    a(f"s_cmp_ge_u32 s{sW}, 4"); a("s_cbranch_scc1 K1_helper")

    def attn_addrs(tperm_sreg=None):
        a(f"v_and_b32 v6, 31, v{vL}"); a("v_lshlrev_b32 v6, 8, v6")
        a(f"v_lshrrev_b32 v7, 5, v{vL}"); a("v_xor_b32 v7, v7, v3"); a("v_lshl_add_u32 v6, v7, 4, v6")
        for s in range(8):
            a(f"v_xor_b32 v{vKA+s}, {s << 5}, v6")
        a(f"v_lshrrev_b32 v6, 5, v{vL}"); a("v_lshl_add_u32 v6, v6, 2, v4"); a("v_lshlrev_b32 v6, 8, v6")
        a("v_lshl_add_u32 v6, v4, 6, v6")
        a("v_and_b32 v7, 1, v2"); a("v_lshl_add_u32 v6, v7, 5, v6"); a("v_lshl_add_u32 v6, v5, 3, v6")
        if tperm_sreg is not None:
            a(f"s_lshl_b32 s{sT0}, s{tperm_sreg}, 6"); a(f"v_xor_b32 v6, s{sT0}, v6")
        for t in range(4):
            a(f"v_xor_b32 v{vVA+t}, {t << 6}, v6")

    def kreads(sub):
        return [f"ds_read_b128 {vr(KF+4*s,4)}, v{vKA+s} offset:{sub*8192}" for s in range(8)]
    def vreads(sub):
        out = []
        for sg in range(2):
            for t in range(4):
                r = VF + 4*(sg*4+t)
                out.append([f"ds_read_b64_tr_b16 {vr(r,2)}, v{vVA+t} offset:{(32*sub+16*sg)*256}",
                            f"ds_read_b64_tr_b16 {vr(r+2,2)}, v{vVA+t} offset:{(32*sub+16*sg+8)*256}"])
        return out
    def s_mfmas(S, cinit):
        out = []
        for s in range(8):
            c = cinit if s == 0 else vr(S, 16)
            out.append(f"v_mfma_f32_32x32x16_bf16 {vr(S,16)}, {vr(KF+4*s,4)}, {vr(vQ+4*s,4)}, {c}")
        return out
    def pv_mfmas(P):
        return [f"v_mfma_f32_32x32x16_bf16 {vr(OO+16*t,16)}, {vr(VF+4*(sg*4+t),4)}, {vr(P+4*sg,4)}, {vr(OO+16*t,16)}"
                for sg in range(2) for t in range(4)]
    def max_ops(S):
        o = [f"v_max3_f32 v{vMX}, v{S}, v{S+1}, v{S+2}", f"v_max3_f32 v{vT0}, v{S+3}, v{S+4}, v{S+5}"]
        o += [f"v_max3_f32 v{vMX}, v{vMX}, v{S+6}, v{S+7}", f"v_max3_f32 v{vT0}, v{vT0}, v{S+8}, v{S+9}"]
        o += [f"v_max3_f32 v{vMX}, v{vMX}, v{S+10}, v{S+11}", f"v_max3_f32 v{vT0}, v{vT0}, v{S+12}, v{S+13}"]
        o += [f"v_max3_f32 v{vMX}, v{vMX}, v{S+14}, v{S+15}", f"v_max_f32 v{vMX}, v{vMX}, v{vT0}"]
        return o
    def sm_ops(S, P):
        o = []
        for j in range(8):
            o.append(f"v_exp_f32 v{S+2*j}, v{S+2*j}")
            o.append(f"v_exp_f32 v{S+2*j+1}, v{S+2*j+1}")
            if j > 0:
                o.append(f"v_add_f32 v{vl0}, v{vl0}, v{S+2*j-2}")
                o.append(f"v_add_f32 v{vl1}, v{vl1}, v{S+2*j-1}")
                o.append(f"v_cvt_pk_bf16_f32 v{P+j-1}, v{S+2*j-2}, v{S+2*j-1}")
        o.append(f"v_add_f32 v{vl0}, v{vl0}, v{S+14}")
        o.append(f"v_add_f32 v{vl1}, v{vl1}, v{S+15}")
        o.append(f"v_cvt_pk_bf16_f32 v{P+7}, v{S+14}, v{S+15}")
        return o
    def xhalf(op, dst):
        return [f"v_mov_b32 v{vT1}, v{dst}", "s_nop 1", f"v_permlane32_swap_b32 v{dst}, v{vT1}", f"{op} v{dst}, v{dst}, v{vT1}"]
    def first_max_ops(S):
        o = max_ops(S) + xhalf("v_max_f32", vMX)
        o += [f"v_sub_f32 v{NEGM+i}, 0, v{vMX}" for i in range(16)]
        o += [f"v_sub_f32 v{S+i}, v{S+i}, v{vMX}" for i in range(16)]
        return o
    tramps = []
    def check_ops(par, tag):
        tramps.append((tag, par))
        return [f"v_cmp_lt_f32 vcc, s{sT}, v{vMX}", f"s_cbranch_vccnz K1_tr_{tag}", f"K1_bk_{tag}:"]
    def rebase(tabreg, cur, addr, n):
        o = [f"s_lshr_b32 s{tabreg}, s{tabreg}, 4", f"s_and_b32 s{sN}, s{tabreg}, 15", f"s_lshl_b32 s{sN}, s{sN}, 14",
             f"s_sub_u32 s{sD}, s{sN}, s{cur}", f"s_mov_b32 s{cur}, s{sN}"]
        return o, [f"v_add_u32 v{addr+i}, s{sD}, v{addr+i}" for i in range(n)]

    a.c("---- main: q-proj setup")
    a(f"s_and_b32 s{sT0}, s{sW}, 1"); a(f"s_lshr_b32 s{sT1}, s{sW}, 1")
    a(f"s_mul_i32 s{sT2}, s{sT1}, {80*128}"); a(f"s_add_u32 s{sT2}, s{sT2}, {RING0}")
    a("v_lshrrev_b32 v6, 1, v3"); a("v_xor_b32 v6, v6, v2"); a("v_lshlrev_b32 v6, 4, v6"); a("v_lshl_add_u32 v6, v3, 7, v6")
    a(f"v_add_u32 v{vXA}, s{sT2}, v6"); a(f"v_xor_b32 v6, 64, v6"); a(f"v_add_u32 v{vXA+1}, s{sT2}, v6")
    a("v_and_b32 v6, 1, v2"); a("v_lshl_or_b32 v6, v6, 2, v4"); a(f"s_lshl_b32 s{sT3}, s{sT0}, 2"); a(f"v_xor_b32 v6, s{sT3}, v6")
    a("v_lshlrev_b32 v6, 5, v6"); a("v_lshl_add_u32 v7, v2, 3, v4"); a("v_lshl_add_u32 v6, v7, 8, v6"); a("v_lshl_add_u32 v6, v5, 3, v6")
    for dt in range(4):
        a(f"v_xor_b32 v7, {dt << 5}, v6"); a(f"v_add_u32 v{vWA+dt}, {RING0+WOFF}, v7")
    attn_addrs()
    def qreads(sub, se):
        o = []
        for dt in range(4):
            for rho in range(2):
                o.append(f"ds_read_b64_tr_b16 {vr(SET[se]+4*dt+2*rho,2)}, v{vWA+dt} offset:{(32*sub+4*rho)*256}")
        b = [f"ds_read_b128 {vr(SET[se]+16+4*i,4)}, v{vXA+sub} offset:{2048*i}" for i in range(5)]
        return [o[0], o[1], b[0], b[1], o[2], o[3], b[2], o[4], o[5], b[3], o[6], o[7], b[4]]
    def qmfmas(se, zero=False):
        o = []
        for dt in range(4):
            for i in range(5):
                d = vr(ACC + 4*(dt*5+i), 4)
                o.append(f"v_mfma_f32_16x16x32_bf16 {d}, {vr(SET[se]+4*dt,4)}, {vr(SET[se]+16+4*i,4)}, {'0' if zero else d}")
        return o
    def ring_adv():
        s = [f"s_add_u32 s{sT2}, s{sT2}, 1", f"s_cmp_eq_u32 s{sT2}, 3", f"s_cselect_b32 s{sD}, -2, 1",
             f"s_cselect_b32 s{sT2}, 0, s{sT2}", f"s_mul_i32 s{sD}, s{sD}, {RSTRIDE}"]
        v = [f"v_add_u32 v{r}, s{sD}, v{r}" for r in list(range(vXA, vXA+2)) + list(range(vWA, vWA+4))]
        return s + v
    a(f"s_mov_b32 s{sT2}, 0"); a(f"s_mov_b32 s{sCnt}, 15")
    a("s_barrier")
    st.stamp()
    a.ext(qreads(0, 0)); a("s_waitcnt lgkmcnt(0)")
    a.ext(weave(qmfmas(0, True), merge(spread(qreads(1, 1), 20, 0, 13), spread(ring_adv(), 20, 14, 20))))
    a.label("K1_qloop")
    a("s_waitcnt lgkmcnt(0)"); a("s_barrier")
    a.ext(weave(qmfmas(1), spread(qreads(0, 0), 20, 0, 13)))
    a("s_waitcnt lgkmcnt(0)")
    a.ext(weave(qmfmas(0), merge(spread(qreads(1, 1), 20, 0, 13), spread(ring_adv() + [f"s_sub_u32 s{sCnt}, s{sCnt}, 1", f"s_cmp_lg_u32 s{sCnt}, 0"], 20, 14, 20))))
    a("s_cbranch_scc1 K1_qloop")
    a("s_waitcnt lgkmcnt(0)"); a("s_barrier")
    st.stamp()
    pre = [f"s_mov_b32 s{sSc}, {f32hex(math.log2(math.e)/math.sqrt(128.0))}",
           f"s_lshl_b32 s{sT2}, s{sT0}, 12",
           f"s_mul_i32 s{sT3}, s{sT1}, {16384+256}", f"s_add_u32 s{sT3}, s{sT3}, s{sT2}", f"s_add_u32 s{sT3}, s{sT3}, {QX}",
           f"s_mul_i32 s{sD}, s{sT1}, {24576-256}", f"s_add_u32 s{sD}, s{sD}, s{sT2}", f"s_add_u32 s{sD}, s{sD}, {QX+256}",
           "v_lshrrev_b32 v6, 1, v2", "v_lshlrev_b32 v6, 9, v6", "v_lshl_add_u32 v6, v3, 4, v6", "v_and_b32 v7, 1, v2",
           "v_lshl_add_u32 v6, v7, 3, v6", f"v_add_u32 v7, s{sD}, v6", f"v_add_u32 v6, s{sT3}, v6"]
    a.ext(weave(qmfmas(1), spread(pre, 20, 0, 16)))
    for dt in range(4):
        for i in range(5):
            r = ACC + 4*(dt*5+i); tmp = SET[0] + 2*((dt*5+i) % 8)
            if dt == 3 and i == 2: a("s_nop 0")
            for j in range(4): a(f"v_mul_f32 v{r+j}, s{sSc}, v{r+j}")
            a(f"v_cvt_pk_bf16_f32 v{tmp}, v{r}, v{r+1}"); a(f"v_cvt_pk_bf16_f32 v{tmp+1}, v{r+2}, v{r+3}")
            a(f"ds_write_b64 v{6 + (i & 1)}, {vr(tmp,2)} offset:{(i//2)*8192 + dt*1024}")
    for i in range(64): a(f"v_mov_b32 v{OO+i}, 0")
    a(f"v_mov_b32 v{vl0}, 0"); a(f"v_mov_b32 v{vl1}, 0")
    a(f"s_mov_b32 s{sKT}, {sum(KSLOT[t] << (4*t) for t in range(8))}")
    a(f"s_mov_b32 s{sVT}, {sum(VSLOT[t] << (4*t) for t in range(8))}")
    a(f"s_mov_b32 s{sKcur}, {KSLOT[0]*16384}"); a(f"s_mov_b32 s{sVcur}, {VSLOT[0]*16384}")
    assert KSLOT[0] == 0
    for t in range(4): a(f"v_add_u32 v{vVA+t}, s{sVcur}, v{vVA+t}")
    a(f"s_lshl_b32 s{sT2}, s{sW}, 13"); a(f"s_add_u32 s{sT2}, s{sT2}, {QX}")
    a(f"v_lshlrev_b32 v6, 4, v{vL}"); a(f"v_add_u32 v7, s{sT2}, v6")
    a("s_waitcnt lgkmcnt(0)"); a("s_barrier")
    st.stamp()
    kr = kreads(0)
    for s in range(8):
        a(f"ds_read_b128 {vr(vQ+4*s,4)}, v7 offset:{s*1024}"); a(kr[s])
        if s == 6: a("s_waitcnt lgkmcnt(8)")
    m = s_mfmas(SS[0], "0"); kr = kreads(1)
    a("s_waitcnt lgkmcnt(0)")
    a.ext(weave(m, [[kr[s]] for s in range(8)]))
    a.c("---- slot 0")
    ks, kv_ = rebase(sKT, sKcur, vKA, 8)
    a("s_waitcnt lgkmcnt(0)"); a("s_barrier")
    m = s_mfmas(SS[1], "0"); kr = kreads(0)
    fm = first_max_ops(SS[0])
    a.ext(ks)
    g = [[kv_[s], kr[s]] for s in range(8)]
    g = merge(g, spread(fm[:30], 8, 3, 8))
    a.ext(weave(m, g))
    vrd = [x for p in vreads(0) for x in p]
    rest = fm[30:] + sm_ops(SS[0], PP[0])
    for i, x in enumerate(rest):
        a(x)
        if i < 16: a(vrd[i])
    for i in range(16): a(f"v_sub_f32 v{SS[1]+i}, v{SS[1]+i}, v{vMX}")

    def slot(par, tag, has_s=True, barrier=False, readk=True, extra_tail=None):
        sub = par
        ms = s_mfmas(SS[1-par], vr(NEGM, 16)) if has_s else []
        mp = pv_mfmas(PP[1-par])
        mx = max_ops(SS[par]); ck = check_ops(par, tag); sm = sm_ops(SS[par], PP[par])
        kr = kreads(sub); vr_ = vreads(sub)
        if has_s:
            g = [[] for _ in range(16)]
            g[0] += mx[:4]; g[1] += mx[4:]; g[2] += ck
            if barrier:
                ks, kv_ = rebase(sKT, sKcur, vKA, 8)
                vs, vv_ = rebase(sVT, sVcur, vVA, 4)
                g[0] += ks[:3]; g[1] += ks[3:]
                g[2] += ["s_waitcnt lgkmcnt(0)", "s_barrier"]
                g[2] += [kv_[0], kr[0], kv_[1], kr[1]]
                g[3] += [kv_[2], kr[2], kv_[3], kr[3]]
                for s in range(4, 8): g[s] += [kv_[s], kr[s]]
                g[7] += vs
                g[7] += vv_
            else:
                for s in range(8): g[s] += [kr[s]]
            g[7] += ["s_waitcnt lgkmcnt(8)"] if not barrier else []
            smg = spread(sm, 16, 3, 16)
            g = merge(g, smg)
            for i in range(8): g[8+i] += vr_[i]
            if extra_tail: g[15] += extra_tail
            a("s_waitcnt lgkmcnt(15)")
            a.ext(weave(ms + mp, g))
        else:
            g = [[] for _ in range(8)]
            a.ext(mx); a.ext(ck)
            a("s_waitcnt lgkmcnt(0)")
            g = merge(g, spread(sm, 8, 0, 8))
            for i in range(8): g[i] += vr_[i]
            a.ext(weave(mp, g))
    a(f"s_mov_b32 s{sCnt}, 7")
    a.label("K1_aloop")
    slot(1, "odd")
    slot(0, "even", barrier=True, extra_tail=[f"s_sub_u32 s{sCnt}, s{sCnt}, 1", f"s_cmp_lg_u32 s{sCnt}, 0"])
    a("s_cbranch_scc1 K1_aloop")
    st.stamp()
    slot(1, "last", has_s=False)
    a("s_waitcnt lgkmcnt(0)"); a("s_barrier")
    fin = [f"v_add_f32 v{vl0}, v{vl0}, v{vl1}"] + xhalf("v_add_f32", vl0) + [f"v_rcp_f32 v{vl0}, v{vl0}"]
    fin += [f"s_mul_i32 s{sOb}, s{sB}, 5", f"s_add_u32 s{sOb}, s{sOb}, s{sW}", f"s_lshl_b32 s{sOb}, s{sOb}, 18",
            f"s_lshl_b32 s{sT0}, s{sH}, 13", f"s_add_u32 s{sOb}, s{sOb}, s{sT0}", f"s_add_u32 s{sOb2}, s{sOb}, 4096",
            f"v_lshlrev_b32 v6, 4, v{vL}"]
    a.ext(weave(pv_mfmas(PP[1]), spread(fin, 8, 0, 8)))
    ont = " nt" if cfg.o_nt else ""
    a("s_nop 7")
    for t in range(4):
        for i in range(16): a(f"v_mul_f32 v{OO+16*t+i}, v{vl0}, v{OO+16*t+i}")
        for j in range(8): a(f"v_cvt_pk_bf16_f32 v{KF+8*t+j}, v{OO+16*t+2*j}, v{OO+16*t+2*j+1}")
        for j in range(2):
            blk = 2*t + j
            a(f"buffer_store_dwordx4 {vr(KF+8*t+4*j,4)}, v6, s[{SWS}:{SWS+3}], s{sOb if blk < 4 else sOb2} offen offset:{(blk % 4)*1024}{ont}")
    if cfg.stamps:
        a("s_waitcnt vmcnt(0)")
    st.stamp()
    st.flush(SWS, sW, 0)
    a("s_endpgm")

    a.label("K1_helper")
    st = Stamper(a, cfg); st.n = 1
    vGX, vGW0, vGW1, vGK, vGV = 8, 9, 10, 11, 12
    a(f"s_sub_u32 s{sHW}, s{sW}, 4")
    a(f"s_and_b32 s{sT0}, s{sHW}, 1"); a(f"s_lshl_b32 s{sT0}, s{sT0}, 2")
    a(f"v_and_b32 v6, 7, v{vL}"); a("v_xor_b32 v6, v6, v2"); a(f"v_xor_b32 v6, s{sT0}, v6"); a("v_lshlrev_b32 v6, 4, v6")
    a(f"v_lshrrev_b32 v7, 3, v{vL}"); a(f"v_lshl_add_u32 v{vGX}, v7, 11, v6")
    a(f"s_mul_i32 s{sXo}, s{sB}, {160*2048}"); a(f"s_lshl_b32 s{sT1}, s{sHW}, 14"); a(f"s_add_u32 s{sXo}, s{sXo}, s{sT1}")
    a(f"s_lshr_b32 s{sT0}, s{sHW}, 1"); a(f"s_lshl_b32 s{sT0}, s{sT0}, 3")
    a("v_lshlrev_b32 v6, 1, v2"); a("v_xor_b32 v6, v6, v3"); a(f"v_xor_b32 v6, s{sT0}, v6"); a("v_lshlrev_b32 v6, 4, v6")
    a(f"v_lshl_add_u32 v{vGW0}, v2, 13, v6")
    a(f"s_lshl_b32 s{sWo}, s{sH}, 8"); a(f"s_lshl_b32 s{sT1}, s{sHW}, 15"); a(f"s_add_u32 s{sWo}, s{sWo}, s{sT1}")
    vm = VmTrack()
    def issue_stage(s):
        base = RING0 + (s % 3) * RSTRIDE
        a(f"s_add_u32 s{sT0}, s{sRot}, {s}"); a(f"s_and_b32 s{sT0}, s{sT0}, 15")
        a(f"s_lshl_b32 s{sT1}, s{sT0}, 7"); a(f"s_add_u32 s{sT1}, s{sT1}, s{sXo}")
        a(f"s_lshl_b32 s{sT2}, s{sT0}, 19"); a(f"s_add_u32 s{sT2}, s{sT2}, s{sWo}")
        a(f"s_lshl_b32 s{sT3}, s{sHW}, 10")
        order = [("w", 0), ("x", 0), ("x", 1), ("w", 1), ("x", 2), ("w", 2), ("x", 3), ("w", 3), ("x", 4)]
        for kind, i in order:
            if kind == "x":
                a(f"s_add_u32 m0, s{sT3}, {base + i*4096}")
                a(f"s_add_u32 s{sD}, s{sT1}, {i*65536}")
                a(f"buffer_load_dwordx4 v{vGX}, s[{SX}:{SX+3}], s{sD} offen{xwnt} lds")
            else:
                a(f"s_add_u32 m0, s{sT3}, {base + WOFF + i*4096}")
                a(f"s_add_u32 s{sD}, s{sT2}, {i*131072}")
                a(f"buffer_load_dwordx4 v{vGW0}, s[{SWQ}:{SWQ+3}], s{sD} offen{xwnt} lds")
            vm.issue(("st", s))
    for s in range(3):
        issue_stage(s)
        if s == 0:
            a(f"s_lshl_b32 s{sT0}, s{sHW}, 2")
            a("v_xor_b32 v6, v3, v2"); a(f"v_xor_b32 v6, s{sT0}, v6"); a("v_lshlrev_b32 v6, 4, v6"); a(f"v_lshl_add_u32 v{vGK}, v2, 8, v6")
            a("v_lshlrev_b32 v6, 2, v2"); a("v_xor_b32 v6, v6, v3"); a("v_lshlrev_b32 v6, 4, v6"); a(f"v_lshl_add_u32 v{vGV}, v2, 8, v6")
            a(f"s_lshl_b32 s{sKV}, s{sB}, 5"); a(f"s_add_u32 s{sKV}, s{sKV}, s{sH}"); a(f"s_lshl_b32 s{sKV}, s{sKV}, 17")
            a(f"s_lshl_b32 s{sT0}, s{sHW}, 10"); a(f"s_add_u32 s{sKV}, s{sKV}, s{sT0}")
    QORD = [("K",0),("K",1),("V",0),("K",2),("V",1),("K",3),("V",2),("K",4),("V",3),("K",5),("V",4),("K",6),("V",5),("K",7),("V",6),("V",7)]
    def issue_kv(q, i):
        kind, t = QORD[q]
        slot_ = (KSLOT if kind == "K" else VSLOT)[t]
        a(f"s_lshl_b32 s{sT3}, s{sHW}, 10")
        a(f"s_add_u32 m0, s{sT3}, {slot_*16384 + i*4096}")
        a(f"s_add_u32 s{sD}, s{sKV}, {t*16384 + i*4096}")
        if kind == "K": a(f"buffer_load_dwordx4 v{vGK}, s[{SK}:{SK+3}], s{sD} offen{kvnt} lds")
        else: a(f"buffer_load_dwordx4 v{vGV}, s[{SV}:{SV+3}], s{sD} offen{kvnt} lds")
        vm.issue(("kv", q))
    def issue_q(q):
        for i in range(4): issue_kv(q, i)
    attn_addrs(sHW)
    for i in range(64): a(f"v_mov_b32 v{OO+i}, 0")
    a(f"v_mov_b32 v{vl0}, 0"); a(f"v_mov_b32 v{vl1}, 0")
    pre = [(q, i) for q in range(3) for i in range(4)]
    for s in range(17):
        if s < 16: a(f"s_waitcnt vmcnt({vm.wait(('st', s))})")
        a("s_barrier")
        if s >= 1 and s + 2 <= 15: issue_stage(s + 2)
        if s >= cfg.kv_start and pre:
            issue_kv(*pre.pop(0))
        if s == 13:
            while pre: issue_kv(*pre.pop(0))
        if s == 14: issue_q(3)
        if s == 15: issue_q(4); issue_q(5); issue_q(6)
    st.stamp()
    a(f"v_lshlrev_b32 v6, 4, v{vL}"); a(f"v_add_u32 v7, {QX + 4*8192}, v6")
    a(f"s_mov_b32 s{sKcur}, 0"); a(f"s_mov_b32 s{sVcur}, 0")
    a(f"s_and_b32 s{sT0}, s{sHW}, 1"); a(f"s_lshl_b32 s{sT0}, s{sT0}, 13")
    for s in range(8): a(f"v_add_u32 v{vKA+s}, s{sT0}, v{vKA+s}")
    for t in range(4): a(f"v_add_u32 v{vVA+t}, s{sT0}, v{vVA+t}")
    a(f"s_waitcnt vmcnt({vm.wait(('kv', 0))})")
    a("s_barrier")
    for s in range(8): a(f"ds_read_b128 {vr(vQ+4*s,4)}, v7 offset:{s*1024}")
    later = {1: [7, 8, 9], 2: [10, 11], 3: [12, 13], 4: [14, 15]}
    def hrebase(tab, p, cur, addr, n):
        a(f"s_cmp_ge_u32 s{sHW}, 2"); a(f"s_cselect_b32 s{sN}, {tab[2*p+1]}, {tab[2*p]}"); a(f"s_lshl_b32 s{sN}, s{sN}, 14")
        a(f"s_sub_u32 s{sD}, s{sN}, s{cur}"); a(f"s_mov_b32 s{cur}, s{sN}")
        for i in range(n): a(f"v_add_u32 v{addr+i}, s{sD}, v{addr+i}")
    for t in range(1, 9):
        p = (t - 1) // 2
        if t % 2 == 1: hrebase(KSLOT, p, sKcur, vKA, 8)
        else: hrebase(VSLOT, p, sVcur, vVA, 4)
        a(f"s_waitcnt vmcnt({vm.wait(('kv', min(2*t, 15)))}) lgkmcnt(0)")
        a("s_barrier")
        if t % 2 == 1:
            a.ext(kreads(0))
            for q in later.get(t, []): issue_q(q)
            m = s_mfmas(SS[0], "0" if p == 0 else vr(NEGM, 16))
            a("s_waitcnt lgkmcnt(0)")
            a.ext(m)
            a("s_nop 11")
            if p == 0: a.ext(first_max_ops(SS[0]))
            else: a.ext(max_ops(SS[0])); a.ext(check_ops(0, f"h{p}"))
            a.ext(sm_ops(SS[0], PP[0]))
        else:
            vrd = [x for pr in vreads(0) for x in pr]
            a.ext(vrd[:12]); a("s_waitcnt lgkmcnt(4)"); a.ext(vrd[12:])
            for q in later.get(t, []): issue_q(q)
            a("s_waitcnt lgkmcnt(0)")
            a.ext(pv_mfmas(PP[0]))
    st.stamp()
    a.c("---- combine the four key-quarters of q-tile 4")
    a(f"v_add_f32 v{vl0}, v{vl0}, v{vl1}"); a.ext(xhalf("v_add_f32", vl0))
    a(f"v_sub_f32 v{vl1}, 0, v{NEGM}")
    a(f"s_lshl_b32 s{sT0}, s{sHW}, 9"); a(f"s_add_u32 s{sT0}, s{sT0}, {CML}")
    a(f"v_lshlrev_b32 v7, 3, v{vL}"); a(f"v_add_u32 v2, s{sT0}, v7")
    a(f"ds_write_b64 v2, {vr(vl0,2)}")
    a(f"v_lshlrev_b32 v6, 4, v{vL}")
    for tau in range(1, 4):
        a(f"s_xor_b32 s{sT0}, s{sHW}, {tau}"); a(f"s_mul_i32 s{sT0}, s{sT0}, {3*4096}"); a(f"s_add_u32 s{sT0}, s{sT0}, {COMB + (tau-1)*4096}")
        a(f"v_add_u32 v{2+tau}, s{sT0}, v6")
    for tau in range(1, 4):
        for j in range(4):
            a(f"ds_write_b128 v{2+tau}, {vr(OO+16*tau+4*j,4)} offset:{j*1024}")
    a(f"s_mul_i32 s{sT0}, s{sHW}, {3*4096}"); a(f"s_add_u32 s{sT0}, s{sT0}, {COMB}")
    a(f"v_add_u32 v3, s{sT0}, v6")
    a("s_waitcnt lgkmcnt(0)"); a("s_barrier")
    ML = SS[0]
    for tau in range(1, 4):
        a(f"v_xor_b32 v4, {tau << 9}, v2")
        a(f"ds_read_b64 {vr(ML+2*tau,2)}, v4")
    for tau in range(1, 4):
        for j in range(4):
            a(f"ds_read_b128 {vr(OO+16*tau+4*j,4)}, v3 offset:{(tau-1)*4096 + j*1024}")
    a(f"v_mov_b32 v{ML}, v{vl0}"); a(f"v_mov_b32 v{ML+1}, v{vl1}")
    a(f"s_mul_i32 s{sOb}, s{sB}, 5"); a(f"s_add_u32 s{sOb}, s{sOb}, 4"); a(f"s_lshl_b32 s{sOb}, s{sOb}, 18")
    a(f"s_lshl_b32 s{sT0}, s{sH}, 13"); a(f"s_add_u32 s{sOb}, s{sOb}, s{sT0}")
    a(f"s_lshl_b32 s{sT0}, s{sHW}, 11"); a(f"s_add_u32 s{sOb}, s{sOb}, s{sT0}")
    a("s_waitcnt lgkmcnt(12)")
    a(f"v_max3_f32 v{vMX}, v{ML+1}, v{ML+3}, v{ML+5}"); a(f"v_max_f32 v{vMX}, v{vMX}, v{ML+7}")
    for tau in range(4): a(f"v_sub_f32 v{ML+2*tau+1}, v{ML+2*tau+1}, v{vMX}")
    for tau in range(4): a(f"v_exp_f32 v{ML+2*tau+1}, v{ML+2*tau+1}")
    a("s_nop 0")
    a(f"v_mul_f32 v{vT0}, v{ML}, v{ML+1}")
    for tau in range(1, 4): a(f"v_fmac_f32 v{vT0}, v{ML+2*tau}, v{ML+2*tau+1}")
    a(f"v_rcp_f32 v{vT0}, v{vT0}"); a("s_nop 0")
    for tau in range(4): a(f"v_mul_f32 v{ML+2*tau+1}, v{ML+2*tau+1}, v{vT0}")
    for i in range(16): a(f"v_mul_f32 v{OO+i}, v{ML+1}, v{OO+i}")
    for tau in range(1, 4):
        a(f"s_waitcnt lgkmcnt({(3-tau)*4})")
        for i in range(16): a(f"v_fmac_f32 v{OO+i}, v{ML+2*tau+1}, v{OO+16*tau+i}")
    for j in range(8): a(f"v_cvt_pk_bf16_f32 v{KF+j}, v{OO+2*j}, v{OO+2*j+1}")
    for j in range(2):
        a(f"buffer_store_dwordx4 {vr(KF+4*j,4)}, v6, s[{SWS}:{SWS+3}], s{sOb} offen offset:{j*1024}{ont}")
    if cfg.stamps:
        a("s_waitcnt vmcnt(0)")
    st.stamp()
    st.flush(SWS, sW, 0)
    a.label("K1_end")
    a("s_endpgm")

    for tag, par in tramps:
        a.label(f"K1_tr_{tag}")
        a(f"s_call_b64 s[{sRet}:{sRet+1}], K1_rare{par}")
        a(f"s_branch K1_bk_{tag}")
    for par in range(2):
        a.label(f"K1_rare{par}")
        a("s_nop 15")
        a.ext(xhalf("v_max_f32", vMX))
        a(f"v_max_f32 v{vMX}, 0, v{vMX}"); a(f"v_ceil_f32 v{vMX}, v{vMX}")
        a(f"v_sub_f32 v{vT0}, 0, v{vMX}"); a(f"v_exp_f32 v{vT0}, v{vT0}")
        for i in range(16):
            a(f"v_sub_f32 v{SS[0]+i}, v{SS[0]+i}, v{vMX}"); a(f"v_sub_f32 v{SS[1]+i}, v{SS[1]+i}, v{vMX}")
            a(f"v_sub_f32 v{NEGM+i}, v{NEGM+i}, v{vMX}")
        for i in range(64): a(f"v_mul_f32 v{OO+i}, v{vT0}, v{OO+i}")
        a(f"v_mul_f32 v{vl0}, v{vT0}, v{vl0}"); a(f"v_mul_f32 v{vl1}, v{vT0}, v{vl1}")
        P = PP[1-par]
        for j in range(8):
            a(f"v_lshlrev_b32 v{vT1}, 16, v{P+j}"); a(f"v_and_b32 v{vT2}, 0xffff0000, v{P+j}")
            a(f"v_mul_f32 v{vT1}, v{vT0}, v{vT1}"); a(f"v_mul_f32 v{vT2}, v{vT0}, v{vT2}")
            a(f"v_cvt_pk_bf16_f32 v{P+j}, v{vT1}, v{vT2}")
        a("s_nop 1")
        a(f"s_setpc_b64 s[{sRet}:{sRet+1}]")

def gen_k2(a, cfg, name):
    SWO, SOUT, SWS = 8, 12, 16
    sW, sMT, sNT = 20, 21, 22
    sO, sWk, sM0, sCnt, sT0, sT1, sJ = 23, 24, 25, 26, 27, 28, 29
    vL = 1; vOA = 8; vWG = 13; vTA = 17
    AS = [24, 40]; BR = 56; ACC = 136
    NB = 4; RED = 65536
    st = Stamper(a, cfg)
    wnt = " nt" if cfg.wo_nt else ""
    kstart(a, name)
    a("s_cmp_ge_u32 s2, 256"); a("s_cbranch_scc1 K2_end")
    st.stamp()
    a("s_load_dwordx4 s[32:35], s[0:1], 32")
    a("s_load_dwordx2 s[36:37], s[0:1], 56")
    a("v_lshrrev_b32 v2, 6, v0"); a(f"v_and_b32 v{vL}, 63, v0")
    a(f"v_readfirstlane_b32 s{sW}, v2")
    a("s_and_b32 s3, s2, 7"); a("s_lshr_b32 s4, s2, 3")
    a("s_lshr_b32 s5, s3, 1"); a("s_lshl_b32 s5, s5, 2"); a("s_and_b32 s6, s4, 3"); a(f"s_add_u32 s{sMT}, s5, s6")
    a("s_and_b32 s5, s3, 1"); a("s_lshl_b32 s5, s5, 3"); a("s_lshr_b32 s6, s4, 2"); a(f"s_add_u32 s{sNT}, s5, s6")
    a(f"v_lshrrev_b32 v2, 4, v{vL}"); a(f"v_and_b32 v3, 15, v{vL}"); a(f"v_bfe_u32 v4, v{vL}, 2, 2"); a(f"v_and_b32 v5, 3, v{vL}")
    a("v_lshlrev_b32 v6, 9, v2"); a("v_lshl_add_u32 v6, v3, 4, v6")
    a(f"s_mul_i32 s{sT0}, s{sMT}, 5")
    for i in range(5):
        a(f"s_add_u32 s3, s{sT0}, {i}"); a("s_and_b32 s4, s3, 1"); a("s_lshl_b32 s4, s4, 8"); a("s_lshr_b32 s3, s3, 1"); a("s_lshl_b32 s3, s3, 18")
        a("s_add_u32 s3, s3, s4"); a(f"v_add_u32 v{vOA+i}, s3, v6")
    a(f"v_and_b32 v6, 7, v{vL}"); a("v_lshlrev_b32 v7, 1, v2"); a("v_xor_b32 v6, v6, v7"); a("v_lshlrev_b32 v6, 4, v6")
    a(f"v_lshrrev_b32 v7, 3, v{vL}"); a("v_lshl_add_u32 v6, v7, 11, v6")
    a(f"s_lshl_b32 s3, s{sNT}, 7")
    for j in range(4):
        a(f"s_add_u32 s4, s3, {j*(16384-1024)}"); a(f"v_add_u32 v{vWG+j}, s4, v6")
    a("v_lshrrev_b32 v6, 1, v2"); a("v_lshlrev_b32 v6, 4, v6"); a("v_and_b32 v7, 1, v2"); a("v_lshl_add_u32 v6, v7, 2, v6"); a("v_add_u32 v6, v6, v4")
    a("v_lshlrev_b32 v6, 7, v6"); a("v_lshl_add_u32 v6, v5, 3, v6")
    a("v_lshlrev_b32 v7, 1, v7"); a("v_lshrrev_b32 v21, 1, v4"); a("v_add_u32 v7, v7, v21"); a(f"v_xor_b32 v7, s{sW}, v7")
    a("v_lshl_add_u32 v6, v7, 5, v6")
    a(f"s_lshl_b32 s{sM0}, s{sW}, 14")
    for u in range(4):
        a(f"v_xor_b32 v7, {u << 5}, v6"); a(f"v_add_u32 v{vTA+u}, s{sM0}, v7")
    a("s_waitcnt lgkmcnt(0)")
    srd(a, SWO, 32, 1 << 23); srd(a, SOUT, 34, 8*160*1024*2); srd(a, SWS, 36, (1 << 28) if cfg.stamps else O_BYTES)
    if cfg.k2_rot:
        a("s_lshr_b32 s4, s2, 3"); a(f"s_mov_b32 s{sJ}, s4")
    else:
        a(f"s_mov_b32 s{sJ}, 0")
    def step_pre(slot_):
        return [f"s_and_b32 s{sT0}, s{sJ}, 31", f"s_lshl_b32 s{sT1}, s{sW}, 5", f"s_add_u32 s{sT0}, s{sT0}, s{sT1}",
                f"s_lshl_b32 s{sO}, s{sT0}, 11", f"s_lshl_b32 s{sWk}, s{sT0}, 16", f"s_add_u32 m0, s{sM0}, {slot_*4096}",
                f"s_add_u32 s{sJ}, s{sJ}, 1"]
    def oload(slot_, i): return f"buffer_load_dwordx4 {vr(BR+20*slot_+4*i,4)}, v{vOA+i}, s[{SWS}:{SWS+3}], s{sO} offen"
    def wload(j): return f"buffer_load_dwordx4 v{vWG+j}, s[{SWO}:{SWO+3}], s{sWk} offen offset:{j*1024}{wnt} lds"
    def treads(slot_, se):
        return [f"ds_read_b64_tr_b16 {vr(AS[se]+4*u+2*rho,2)}, v{vTA+u} offset:{slot_*4096+rho*1024}" for u in range(4) for rho in range(2)]
    def mfmas(slot_, se, zero=False):
        o = []
        for i in range(5):
            for u in range(4):
                d = vr(ACC + 4*(i*4+u), 4)
                o.append(f"v_mfma_f32_16x16x32_bf16 {d}, {vr(AS[se]+4*u,4)}, {vr(BR+20*slot_+4*i,4)}, {'0' if zero else d}")
        return o
    for s in range(NB):
        a.ext(step_pre(s))
        for j in range(4): a(wload(j))
        for i in range(5): a(oload(s, i))
    for i in range(80): a(f"v_mov_b32 v{ACC+i}, 0")
    a(f"s_waitcnt vmcnt({9*(NB-1)})")
    st.stamp()
    a.ext(treads(0, 0))
    def step(jm, loads, nextread, vmw):
        g = [[] for _ in range(20)]
        if nextread:
            a(f"s_waitcnt vmcnt({vmw}) lgkmcnt(0)")
            g = merge(g, spread(treads((jm+1) % NB, (jm+1) % 2), 20, 0, 8))
        else:
            a("s_waitcnt lgkmcnt(0)")
        if loads:
            pre = step_pre(jm)
            g[0] += pre[:4]; g[1] += pre[4:]
            for j in range(4): g[2 + 4*j] += [wload(j)]
            for i in range(5): g[4*i + 3] += [oload(jm, i)]
        return g
    a(f"s_mov_b32 s{sCnt}, 7")
    a.label("K2_loop")
    for jm in range(4):
        g = step(jm, True, True, 9*(NB-2))
        if jm == 3: g[17] += [f"s_sub_u32 s{sCnt}, s{sCnt}, 1", f"s_cmp_lg_u32 s{sCnt}, 0"]
        a.ext(weave(mfmas(jm, jm % 2), g))
    a("s_cbranch_scc1 K2_loop")
    for jm in range(4):
        g = step(jm, False, jm < 3, 9*max(0, 2-jm))
        a.ext(weave(mfmas(jm, jm % 2), g))
    st.stamp()
    a.c("---- cross-wave reduction")
    a(f"v_lshlrev_b32 v6, 4, v{vL}")
    for up in range(1, 4):
        a(f"s_xor_b32 s{sT0}, s{sW}, {up}"); a(f"s_mul_i32 s{sT0}, s{sT0}, 15360"); a(f"s_add_u32 s{sT0}, s{sT0}, {RED + (up-1)*5120}")
        a(f"v_add_u32 v{8+up}, s{sT0}, v6")
    a(f"s_mul_i32 s{sT0}, s{sW}, 15360"); a(f"s_add_u32 s{sT0}, s{sT0}, {RED}"); a(f"v_add_u32 v8, s{sT0}, v6")
    for i in range(5):
        for up in range(1, 4):
            a(f"ds_write_b128 v{8+up}, {vr(ACC+4*(i*4+up),4)} offset:{i*1024}")
    a(f"s_mul_i32 s{sT0}, s{sMT}, {80*2048}"); a(f"s_lshl_b32 s{sT1}, s{sNT}, 7"); a(f"s_add_u32 s{sT0}, s{sT0}, s{sT1}")
    a(f"s_lshl_b32 s{sT1}, s{sW}, 5"); a(f"s_add_u32 s{sT0}, s{sT0}, s{sT1}")
    a("v_lshlrev_b32 v7, 11, v3"); a("v_lshl_add_u32 v7, v2, 3, v7")
    a("s_waitcnt lgkmcnt(0)"); a("s_barrier")
    for i in range(5):
        for up in range(1, 4):
            a(f"ds_read_b128 {vr(ACC+4*(i*4+up),4)}, v8 offset:{(up-1)*5120 + i*1024}")
    for i in range(5):
        a(f"s_waitcnt lgkmcnt({(4-i)*3})")
        r = ACC + 16*i
        for j in range(4): a(f"v_add_f32 v{r+j}, v{r+j}, v{r+4+j}")
        for j in range(4): a(f"v_add_f32 v{r+8+j}, v{r+8+j}, v{r+12+j}")
        for j in range(4): a(f"v_add_f32 v{r+j}, v{r+j}, v{r+8+j}")
        a(f"v_cvt_pk_bf16_f32 v{24+2*i}, v{r}, v{r+1}"); a(f"v_cvt_pk_bf16_f32 v{25+2*i}, v{r+2}, v{r+3}")
        a(f"buffer_store_dwordx2 {vr(24+2*i,2)}, v7, s[{SOUT}:{SOUT+3}], s{sT0} offen")
        a(f"s_add_u32 s{sT0}, s{sT0}, 32768")
    if cfg.stamps:
        a("s_waitcnt vmcnt(0)")
    st.stamp()
    st.flush(SWS, sW, 1)
    a.label("K2_end")
    a("s_endpgm")

def gen_probe(a, cfg, name):
    mode, rest = cfg.probe.split(":"); ka, ia, kb, ib = [int(x) for x in rest.split(",")]
    kstart(a, name)
    a("s_cmp_ge_u32 s2, 1"); a("s_cbranch_scc1 K3_end")
    a("s_load_dwordx2 s[4:5], s[0:1], 56"); a("s_memrealtime s[20:21]")
    a("s_waitcnt lgkmcnt(0)")
    srd(a, 8, 4, 1 << 28)
    a("v_lshlrev_b32 v1, 10, v0")
    a(f"s_mov_b32 s6, {STAMP_BASE + ka*(1<<20) + 4*ia}"); a(f"s_mov_b32 s7, {STAMP_BASE + kb*(1<<20) + 4*ib}")
    a("buffer_load_dword v2, v1, s[8:11], s6 offen"); a("buffer_load_dword v3, v1, s[8:11], s7 offen")
    a("v_mov_b32 v4, 0"); a("v_mov_b32 v5, -1"); a("v_mov_b32 v6, 0")
    a("ds_write_b32 v4, v4"); a("ds_write_b32 v4, v5 offset:4"); a("ds_write_b32 v4, v4 offset:8")
    a("s_waitcnt vmcnt(0) lgkmcnt(0)"); a("s_barrier")
    a("v_sub_u32 v7, v3, v2")
    a("ds_add_u32 v4, v7"); a("ds_min_u32 v4, v2 offset:4"); a("ds_max_u32 v4, v3 offset:8")
    a("s_waitcnt lgkmcnt(0)"); a("s_barrier")
    a("ds_read_b32 v7, v4"); a("ds_read_b32 v8, v4 offset:4"); a("ds_read_b32 v9, v4 offset:8")
    a("s_waitcnt lgkmcnt(0)")
    if mode == "span":
        a("v_sub_u32 v7, v9, v8"); a("v_lshlrev_b32 v7, 4, v7")
    else:
        a("v_lshrrev_b32 v7, 4, v7")
    a("s_nop 1"); a("v_readfirstlane_b32 s12, v7")
    a("s_nop 1"); a("s_min_u32 s12, s12, 200000")
    a.label("K3_spin")
    a("s_memrealtime s[22:23]"); a("s_waitcnt lgkmcnt(0)")
    a("s_sub_u32 s13, s22, s20"); a("s_cmp_lt_u32 s13, s12"); a("s_cbranch_scc1 K3_spin")
    a.label("K3_end")
    a("s_endpgm")

def build(cfg):
    a = Asm()
    n1 = "standalone__mha_block_cached__near_ridge_kernel"; n2 = "mha_oproj_kernel"
    a(f"; @launch kernel={n1} grid=(256,1,1) block=(512,1,1) lds=163840")
    a(f"; @launch kernel={n2} grid=(256,1,1) block=(256,1,1) lds=131072")
    if cfg.probe: a("; @launch kernel=probe_kernel grid=(1,1,1) block=(256,1,1) lds=1024")
    a(HEAD)
    gen_k1(a, cfg, n1)
    gen_k2(a, cfg, n2)
    if cfg.probe: gen_probe(a, cfg, "probe_kernel")
    a('.section .rodata,"a"')
    if cfg.probe: kdesc(a, "probe_kernel", 32, 32)
    kdesc(a, n1, 256, 100); kdesc(a, n2, 256, 100)
    return a.text()

if __name__ == "__main__":
    cfg = Cfg()
    out = sys.argv[1]
    for kv in sys.argv[2:]:
        k, v = kv.split("=")
        setattr(cfg, k, v if isinstance(getattr(Cfg, k), str) else type(getattr(Cfg, k))(eval(v)))
    t = build(cfg)
    errs, n = check(t)
    for e in errs: print("HAZARD", e)
    open(out, "w").write(t)
    print(f"wrote {out}: {n} instrs, {len(t)} bytes, {len(errs)} hazards")
```
